```python
import torch

def _softmax(x, axis=-1):
    return torch.softmax(x, dim=axis)
def _gelu(x):
    return torch.nn.functional.gelu(x, approximate="tanh")
def _silu(x):
    return torch.nn.functional.silu(x)
def _sigmoid(x):
    return torch.sigmoid(x)
def _layernorm(x, axis=-1, eps=1e-5):
    m = x.mean(dim=axis, keepdim=True)
    v = x.var(dim=axis, keepdim=True, unbiased=False)
    return (x - m) / torch.sqrt(v + eps)
def _scatter_add(tgt, idx, src, axis=0):
    return tgt.clone().index_add_(axis, idx, src)
def _segment_sum(src, seg, n):
    out = torch.zeros((n,) + src.shape[1:], dtype=src.dtype)
    return out.index_add_(0, seg, src)
def _pad(x, pw):
    flat = tuple(v for pair in reversed(pw) for v in pair)
    return torch.nn.functional.pad(x, flat)

kernel_name = 'sequential_preLN__sliding_block__dense_activation_relu__prompt'

def setup_inputs():

    _w = (lambda a: (lambda t: t.to(torch.bfloat16) if t.is_floating_point() else t)(torch.as_tensor(a)))
    def _A_setup():
        B, S, D = 1, 2048, 640
        return {
            "x": _w((lambda *s: torch.randn(*s, dtype=torch.bfloat16) * 0.05)(B, S, D)),
            "wqkv": _w((lambda *s: torch.randn(*s, dtype=torch.bfloat16) * 0.05)(D, 3 * D)),
            "wo": _w((lambda *s: torch.randn(*s, dtype=torch.bfloat16) * 0.05)(D, D)),
        }
    _A_in = _A_setup()

    def _B_setup():
        B, S, D, Dff = 1, 2048, 640, 1728
        return {
            "x": _w((lambda *s: torch.randn(*s, dtype=torch.bfloat16) * 0.05)(B, S, D)),
            "w1": _w((lambda *s: torch.randn(*s, dtype=torch.bfloat16) * 0.05)(D, Dff)),
            "w2": _w((lambda *s: torch.randn(*s, dtype=torch.bfloat16) * 0.05)(Dff, D)),
        }
    _B_in = _B_setup()

    return {
        "A_x": _A_in["x"],
        "A_wqkv": _A_in["wqkv"],
        "A_wo": _A_in["wo"],
        "B_x": _B_in["x"],
        "B_w1": _B_in["w1"],
        "B_w2": _B_in["w2"],
    }

def reference(A_x, A_wqkv, A_wo, B_x, B_w1, B_w2):
    def _A_ref(x, wqkv, wo):
        B, S, D = x.shape
        H = 32; Dh = D // H; W = 256
        qkv = (lambda x, *d: x.permute(*d))((x @ wqkv).reshape(B, S, 3, H, Dh), 2, 0, 3, 1, 4)
        q, k, v = qkv[0], qkv[1], qkv[2]
        scores = torch.einsum("bhqd,bhkd->bhqk", q, k) * (Dh ** -0.5)
        idx = torch.arange(S)
        mask = (idx[:, None] - idx[None, :] >= 0) & (idx[:, None] - idx[None, :] < W)
        scores = torch.where(mask[None, None], scores, -1e9)
        p = _softmax(scores, axis=-1)
        o = torch.einsum("bhqk,bhkd->bhqd", p, v)
        return (lambda x, *d: x.permute(*d))(o, 0, 2, 1, 3).reshape(B, S, D) @ wo

    def _B_ref(x, w1, w2):
        h = torch.einsum("bsd,df->bsf", x, w1)
        zero = torch.zeros_like(h)
        h = torch.maximum(h, zero)
        return torch.einsum("bsf,fd->bsd", h, w2)

    x = A_x
    h = x + _A_ref(_layernorm(x, axis=-1), A_wqkv, A_wo)
    h2 = h + _B_ref(_layernorm(h, axis=-1), B_w1, B_w2)
    return h2
```

```python
import sys, math

S = 2048; D = 640; DFF = 1728
PL = S * 16
WS_QKV = 0
WS_O   = 0x800000
WS_H   = 0xB00000
WS_H1  = 0xE00000
QSCALE = math.log2(math.e) * (20 ** -0.5)

import struct
def f2u(f): return struct.unpack("<I", struct.pack("<f", f))[0]

class Kern:
    def __init__(self, name):
        self.name = name; self.L = []; self.nv = 0; self.ns = 0; self.uid = 0
    def e(self, s):
        for ln in s.strip("\n").split("\n"):
            self.L.append("  " + ln.strip())
    def lab(self, l): self.L.append(f"{l}:")
    def newlab(self, p):
        self.uid += 1
        return f"L_{self.name}_{p}_{self.uid}"
    def text(self, vgprs, sgprs=96):
        acc = (vgprs + 3) // 4 * 4
        hdr = f""".globl {self.name}
.p2align 8
.type {self.name},@function
{self.name}:
"""
        return hdr + "\n".join(self.L) + "\n"
    def desc(self, vgprs, sgprs=96):
        acc = (vgprs + 3) // 4 * 4
        return f""".p2align 6
.amdhsa_kernel {self.name}
  .amdhsa_next_free_vgpr {vgprs}
  .amdhsa_next_free_sgpr {sgprs}
  .amdhsa_accum_offset {acc}
  .amdhsa_group_segment_fixed_size 0
  .amdhsa_kernarg_size 72
  .amdhsa_user_sgpr_count 2
  .amdhsa_user_sgpr_kernarg_segment_ptr 1
  .amdhsa_system_sgpr_workgroup_id_x 1
.end_amdhsa_kernel
"""

def vr(b, n=1): return f"v{b}" if n == 1 else f"v[{b}:{b+n-1}]"
def sr(b, n=1): return f"s{b}" if n == 1 else f"s[{b}:{b+n-1}]"

P_X, P_WQKV, P_WO, P_W1, P_W2, P_OUT, P_WS = 44, 46, 48, 52, 54, 56, 60

def srd(k, d, ptr, off, nbytes):
    if off:
        k.e(f"s_add_u32 s{d}, s{ptr}, 0x{off:x}\ns_addc_u32 s{d+1}, s{ptr+1}, 0")
        k.e(f"s_and_b32 s{d+1}, s{d+1}, 0xffff")
    else:
        k.e(f"s_mov_b32 s{d}, s{ptr}\ns_and_b32 s{d+1}, s{ptr+1}, 0xffff")
    k.e(f"s_mov_b32 s{d+2}, 0x{nbytes:x}\ns_mov_b32 s{d+3}, 0x20000")

def gen_gemm(name, cfg):
    k = Kern(name)
    big = cfg["big"]; Kd = cfg["K"]; N = cfg["N"]; amode = cfg["amode"]; epi = cfg["epi"]
    NSL = cfg["slots"]
    if big: BM, BN, WM, WN, MT, NT = 128, 128, 2, 2, 4, 4
    else:   BM, BN, WM, WN, MT, NT = 64, 80, 4, 1, 1, 5
    NST = Kd // 64
    ldb2 = N * 2
    ncb = (N + BN - 1) // BN
    nrb = S // BM
    RBX = nrb // 8
    grid = nrb * ncb
    ASZ = BM * 128
    BSZ = 64 * 256 if big else 12 * 1024
    SLOT = ASZ + BSZ
    DA = ASZ // 1024 // 4
    DB = 4 if big else 3
    DD = DA + DB
    XCH = NSL * SLOT
    lds = XCH + (2048 if epi in ("qkv", "ffn1") else 0)
    ln = epi in ("qkv", "ffn1")
    PS = BM * 16

    SA, SB, SO, SR = 4, 8, 12, 16
    sW, sRB, sCB, sROW0, sCOL0, sC, sKA, sKB, sPF, sDELTA, sSLOT, sNRA, sNRB = range(20, 33)
    sDST = 33
    sT = 62; sT2 = 63; sT3 = 64; sWM = 65; sWN = 66; sONE = 67; sSC = 68; sWRAP = 69; sOOF = 70
    v = 1
    def alloc(n, al=1):
        nonlocal v
        v = (v + al - 1) // al * al
        b = v; v += n; return b
    vLANE = alloc(1); vG = alloc(1); vL16 = alloc(1); vT = alloc(1); vT2 = alloc(1); vT3 = alloc(1)
    vDA = alloc(DA); vDB = alloc(DB)
    nAaddr = 2 if amode == "row" else 1
    vAA = alloc(nAaddr)
    nBaddr = NT if big else 1
    vBA = alloc(nBaddr)
    vACC = alloc(MT * NT * 4, 4)
    vXF = [alloc(MT * 4, 4) for _ in range(2)]
    vWF = [alloc(NT * 4, 4) for _ in range(2)]
    if ln:
        vSUM = alloc(2); vSQ = alloc(2); vCS = alloc(2)
        vST = alloc(MT * 2, 2)
        vNM = alloc(MT * 2, 2); vRS = alloc(MT * 2, 2)
        vCSR = alloc(NT * 4, 4)
    else:
        vRES = alloc(NT * 2, 2)
    vSTA = alloc(MT)
    vPK = alloc(8, 4)
    nv = v
    def acc(mt, nt): return vACC + (mt * NT + nt) * 4

    Lend = k.newlab("end")
    k.e(f"s_cmp_ge_u32 s2, {grid}\ns_cbranch_scc1 {Lend}")
    k.e("s_load_dwordx16 s[44:59], s[0:1], 0\ns_load_dwordx2 s[60:61], s[0:1], 64")
    k.e(f"v_and_b32 v{vLANE}, 63, v0\nv_lshrrev_b32 v{vT}, 6, v0")
    k.e(f"v_lshrrev_b32 v{vG}, 4, v{vLANE}\nv_and_b32 v{vL16}, 15, v{vLANE}")
    k.e(f"v_readfirstlane_b32 s{sW}, v{vT}")
    k.e(f"s_and_b32 s{sT}, s2, 7\ns_lshr_b32 s{sT2}, s2, 3")
    k.e(f"s_mul_i32 s{sRB}, s{sT}, {RBX}\ns_and_b32 s{sT3}, s{sT2}, {RBX-1}\ns_add_u32 s{sRB}, s{sRB}, s{sT3}")
    k.e(f"s_lshr_b32 s{sCB}, s{sT2}, {int(math.log2(RBX))}")
    k.e(f"s_mul_i32 s{sROW0}, s{sRB}, {BM}\ns_mul_i32 s{sCOL0}, s{sCB}, {BN}")
    if big:
        k.e(f"s_lshr_b32 s{sWM}, s{sW}, 1\ns_and_b32 s{sWN}, s{sW}, 1")
    else:
        k.e(f"s_mov_b32 s{sWM}, s{sW}\ns_mov_b32 s{sWN}, 0")
    k.e(f"s_mov_b32 s{sONE}, 0x3f803f80\ns_mov_b32 s{sWRAP}, {-(NSL-1)*SLOT}")

    if amode == "planar":
        if big:
            k.e(f"s_lshr_b32 s{sT}, s{sW}, 1\ns_mul_i32 s{sT}, s{sT}, {PL}\ns_and_b32 s{sT2}, s{sW}, 1\ns_lshl_b32 s{sT2}, s{sT2}, 10")
            k.e(f"s_add_u32 s{sT}, s{sT}, s{sT2}\ns_lshl_b32 s{sT2}, s{sROW0}, 4\ns_add_u32 s{sT}, s{sT}, s{sT2}")
            k.e(f"v_lshl_add_u32 v{vDA}, v{vLANE}, 4, s{sT}")
            for i in range(1, DA): k.e(f"v_add_u32 v{vDA+i}, 0x{2*i*PL:x}, v{vDA}")
        else:
            k.e(f"s_mul_i32 s{sT}, s{sW}, {PL}\ns_lshl_b32 s{sT2}, s{sROW0}, 4\ns_add_u32 s{sT}, s{sT}, s{sT2}")
            k.e(f"v_lshl_add_u32 v{vDA}, v{vLANE}, 4, s{sT}")
            for i in range(1, DA): k.e(f"v_add_u32 v{vDA+i}, 0x{4*i*PL:x}, v{vDA}")
        KA_STEP = 8 * PL
    else:
        k.e(f"s_and_b32 s{sT}, s{sW}, 1\ns_lshl_b32 s{sT}, s{sT}, 2")
        k.e(f"v_add_u32 v{vT}, s{sT}, v{vG}\nv_and_b32 v{vT}, 7, v{vT}\nv_and_b32 v{vT2}, 7, v{vLANE}\nv_xor_b32 v{vT}, v{vT}, v{vT2}\nv_lshlrev_b32 v{vT}, 4, v{vT}")
        k.e(f"v_lshrrev_b32 v{vT2}, 3, v{vLANE}")
        k.e(f"s_lshl_b32 s{sT}, s{sW}, 3\ns_add_u32 s{sT}, s{sT}, s{sROW0}")
        k.e(f"v_add_u32 v{vT2}, s{sT}, v{vT2}\nv_mul_u32_u24 v{vT2}, 1280, v{vT2}\nv_add_u32 v{vDA}, v{vT}, v{vT2}")
        for i in range(1, DA): k.e(f"v_add_u32 v{vDA+i}, {32*i*1280}, v{vDA}")
        KA_STEP = 128
    if big:
        k.e(f"s_lshr_b32 s{sT}, s{sW}, 1\ns_lshl_b32 s{sT}, s{sT}, 2")
        k.e(f"v_add_u32 v{vT}, s{sT}, v{vG}\nv_lshlrev_b32 v{vT}, 1, v{vT}\nv_xor_b32 v{vT}, v{vT}, v{vL16}\nv_lshlrev_b32 v{vT}, 4, v{vT}")
        k.e(f"s_lshl_b32 s{sT}, s{sW}, 2\nv_add_u32 v{vT2}, s{sT}, v{vG}\nv_mul_u32_u24 v{vT2}, {ldb2}, v{vT2}")
        k.e(f"s_lshl_b32 s{sT}, s{sCOL0}, 1\nv_add3_u32 v{vDB}, v{vT}, v{vT2}, s{sT}")
        for i in range(1, DB): k.e(f"v_add_u32 v{vDB+i}, {16*i*ldb2}, v{vDB}")
    else:
        k.e(f"s_mov_b32 s{sT3}, 0x1999999a")
        for i in range(DB):
            k.e(f"s_add_u32 s{sT}, s{sW}, {4*i}\ns_lshl_b32 s{sT}, s{sT}, 6\nv_add_u32 v{vT}, s{sT}, v{vLANE}")
            k.e(f"v_mul_hi_u32 v{vT2}, v{vT}, s{sT3}")
            k.e(f"v_mul_u32_u24 v{vT3}, 10, v{vT2}\nv_sub_u32 v{vT}, v{vT}, v{vT3}\nv_lshlrev_b32 v{vT}, 4, v{vT}")
            d = vDB + i
            k.e(f"v_and_b32 v{d}, 0x23, v{vT2}")
            k.e(f"v_bfe_u32 v{vT3}, v{vT2}, 2, 2\nv_lshl_add_u32 v{d}, v{vT3}, 3, v{d}")
            k.e(f"v_bfe_u32 v{vT3}, v{vT2}, 4, 1\nv_lshl_add_u32 v{d}, v{vT3}, 2, v{d}")
            k.e(f"v_mul_u32_u24 v{d}, {ldb2}, v{d}\ns_lshl_b32 s{sT}, s{sCOL0}, 1\nv_add3_u32 v{d}, v{d}, v{vT}, s{sT}")
            if i == 2:
                k.e(f"s_cmp_ge_u32 s{sW}, 2\ns_cselect_b32 s{sT}, 0x40000000, 0\nv_add_u32 v{d}, s{sT}, v{d}")
    KB_STEP = 64 * ldb2
    for i in range(DA): k.e(f"s_lshl_b32 s{sDST+i}, s{sW}, 10\ns_add_u32 s{sDST+i}, s{sDST+i}, {4096*i}")
    for i in range(DB): k.e(f"s_lshl_b32 s{sDST+DA+i}, s{sW}, 10\ns_add_u32 s{sDST+DA+i}, s{sDST+DA+i}, {ASZ+4096*i}")

    if big:
        vAA2 = alloc(nAaddr); nv = v
    if amode == "planar":
        MSTEP = 256
        k.e(f"v_mul_u32_u24 v{vAA}, {PS}, v{vG}\nv_lshl_add_u32 v{vAA}, v{vL16}, 4, v{vAA}")
        k.e(f"s_mul_i32 s{sT}, s{sWM}, {MT*256}\nv_add_u32 v{vAA}, s{sT}, v{vAA}")
    else:
        MSTEP = 2048
        k.e(f"v_lshrrev_b32 v{vT}, 1, v{vL16}\nv_xor_b32 v{vT}, v{vT}, v{vG}\nv_lshlrev_b32 v{vT}, 4, v{vT}\nv_lshl_add_u32 v{vAA}, v{vL16}, 7, v{vT}")
        k.e(f"s_mul_i32 s{sT}, s{sWM}, {MT*2048}\nv_add_u32 v{vAA}, s{sT}, v{vAA}\nv_xor_b32 v{vAA+1}, 64, v{vAA}")
    if big:
        k.e(f"s_mul_i32 s{sT}, s{sWN}, {2*MSTEP}")
        for j in range(nAaddr):
            k.e(f"v_sub_u32 v{vAA2+j}, v{vAA+j}, s{sT}\nv_add_u32 v{vAA+j}, s{sT}, v{vAA+j}")
    def xaddr(mt, ks):
        base = (vAA if (mt < 2 or not big) else vAA2)
        if amode == "planar": return base, 4 * ks * PS + mt * 256
        return base + ks, mt * 2048
    k.e(f"v_lshrrev_b32 v{vT}, 2, v{vL16}\nv_and_b32 v{vT2}, 3, v{vL16}")
    if big:
        k.e(f"v_and_b32 v{vT3}, 1, v{vG}\nv_lshl_add_u32 v{vT3}, v{vT3}, 2, v{vT}")
        k.e(f"v_lshl_add_u32 v{vT}, v{vG}, 3, v{vT}\nv_lshlrev_b32 v{vT}, 8, v{vT}\nv_lshl_add_u32 v{vT}, v{vT2}, 3, v{vT}\nv_add_u32 v{vT}, {ASZ}, v{vT}")
        for nt in range(NT):
            k.e(f"s_lshl_b32 s{sT}, s{sWM}, 1\ns_add_u32 s{sT}, s{sT}, {nt}\ns_and_b32 s{sT}, s{sT}, 3\ns_lshl_b32 s{sT2}, s{sWN}, 2\ns_add_u32 s{sT}, s{sT}, s{sT2}")
            k.e(f"v_xor_b32 v{vBA+nt}, s{sT}, v{vT3}\nv_lshl_add_u32 v{vBA+nt}, v{vBA+nt}, 5, v{vT}")
        def waddr(nt, ks, sec): return vBA + nt, ks * 8192 + sec * 1024
    else:
        k.e(f"v_lshl_add_u32 v{vT}, v{vG}, 2, v{vT}\nv_mul_u32_u24 v{vT}, 160, v{vT}\nv_lshl_add_u32 v{vBA}, v{vT2}, 3, v{vT}\nv_add_u32 v{vBA}, {ASZ}, v{vBA}")
        def waddr(nt, ks, sec): return vBA, ks * 32 * 160 + sec * 16 * 160 + nt * 32

    for i in range(MT * NT * 4): k.e(f"v_mov_b32 v{vACC+i}, 0")
    if ln:
        for i in range(2): k.e(f"v_mov_b32 v{vSUM+i}, 0\nv_mov_b32 v{vSQ+i}, 0\nv_mov_b32 v{vCS+i}, 0")

    k.e("s_waitcnt lgkmcnt(0)")
    A_src = cfg["A"]; B_src = cfg["B"]
    if A_src[0] == "ws": srd(k, SA, P_WS, A_src[1], A_src[2])
    else: srd(k, SA, A_src[0], 0, A_src[2])
    srd(k, SB, B_src, 0, Kd * N * 2)
    O_dst = cfg["O"]
    if O_dst[0] == "ws": srd(k, SO, P_WS, O_dst[1], O_dst[2])
    else: srd(k, SO, O_dst[0], 0, O_dst[2])
    k.e(f"s_mov_b32 s{sNRA}, s{SA+2}\ns_mov_b32 s{sNRB}, s{SB+2}")

    if not ln:
        R = cfg["R"]
        if R[0] == "ws": srd(k, SR, P_WS, R[1], R[2])
        else: srd(k, SR, R[0], 0, R[2])
        k.e(f"s_lshl_b32 s{sT}, s{sW}, 4\ns_add_u32 s{sT}, s{sT}, s{sROW0}\nv_add_u32 v{vT}, s{sT}, v{vL16}")
        if cfg["rmode"] == "row":
            k.e(f"v_mul_u32_u24 v{vT}, 1280, v{vT}\nv_lshl_add_u32 v{vT}, v{vG}, 3, v{vT}\ns_lshl_b32 s{sT}, s{sCOL0}, 1\nv_add_u32 v{vT}, s{sT}, v{vT}")
            for nt in range(NT):
                k.e(f"buffer_load_dwordx2 {vr(vRES+2*nt,2)}, v{vT}, {sr(SR,4)}, 0 offen offset:{nt*32}")
        else:
            k.e(f"v_lshlrev_b32 v{vT}, 4, v{vT}\nv_lshrrev_b32 v{vT2}, 1, v{vG}\nv_mul_u32_u24 v{vT2}, {PL}, v{vT2}\nv_add_u32 v{vT}, v{vT}, v{vT2}")
            k.e(f"v_and_b32 v{vT2}, 1, v{vG}\nv_lshl_add_u32 v{vT}, v{vT2}, 3, v{vT}")
            k.e(f"s_lshr_b32 s{sT}, s{sCOL0}, 3\ns_mul_i32 s{sT}, s{sT}, {PL}")
            for nt in range(NT):
                k.e(f"buffer_load_dwordx2 {vr(vRES+2*nt,2)}, v{vT}, {sr(SR,4)}, s{sT} offen")
                if nt < NT - 1: k.e(f"s_add_u32 s{sT}, s{sT}, {2*PL}")

    def issue_dma():
        for i in range(DA):
            k.e(f"s_add_u32 m0, s{sPF}, s{sDST+i}\ns_nop 0\nbuffer_load_dwordx4 v{vDA+i}, {sr(SA,4)}, s{sKA} offen lds")
        for i in range(DB):
            k.e(f"s_add_u32 m0, s{sPF}, s{sDST+DA+i}\ns_nop 0\nbuffer_load_dwordx4 v{vDB+i}, {sr(SB,4)}, s{sKB} offen lds")
        k.e(f"s_add_u32 s{sKA}, s{sKA}, {KA_STEP}\ns_add_u32 s{sKB}, s{sKB}, {KB_STEP}")

    def read_frags(st, ks):
        for mt in range(MT):
            a, off = xaddr(mt, ks)
            k.e(f"ds_read_b128 {vr(vXF[st]+4*mt,4)}, v{a} offset:{off}")
        for nt in range(NT):
            for sec in range(2):
                a, off = waddr(nt, ks, sec)
                k.e(f"ds_read_b64_tr_b16 {vr(vWF[st]+4*nt+2*sec,2)}, v{a} offset:{off}")
    NRD = MT + 2 * NT

    def mfmas(st):
        stat = []
        if ln:
            for mt in range(2):
                for r in range(4):
                    x = vXF[st] + 4 * mt + r
                    stat.append(f"v_dot2_f32_bf16 v{vSUM+mt}, v{x}, s{sONE}, v{vSUM+mt}")
                    stat.append(f"v_dot2_f32_bf16 v{vSQ+mt}, v{x}, v{x}, v{vSQ+mt}")
            for nt in range(2):
                for r in range(4):
                    stat.append(f"v_dot2_f32_bf16 v{vCS+nt}, v{vWF[st]+4*nt+r}, s{sONE}, v{vCS+nt}")
        n = MT * NT; i = 0
        for mt in range(MT):
            for nt in range(NT):
                a = acc(mt, nt)
                k.e(f"v_mfma_f32_16x16x32_bf16 {vr(a,4)}, {vr(vWF[st]+4*nt,4)}, {vr(vXF[st]+4*mt,4)}, {vr(a,4)}")
                lo = len(stat) * i // n; hi = len(stat) * (i + 1) // n
                for s_ in stat[lo:hi]: k.e(s_)
                i += 1

    k.e(f"s_mov_b32 s{sKA}, 0\ns_mov_b32 s{sKB}, 0\ns_mov_b32 s{sPF}, 0")
    for st in range(NSL):
        issue_dma()
        k.e(f"s_add_u32 s{sPF}, s{sPF}, {SLOT}")
    k.e(f"s_mov_b32 s{sPF}, 0\ns_mov_b32 s{sSLOT}, 0\ns_mov_b32 s{sC}, 0")
    k.e(f"s_waitcnt vmcnt({(NSL-1)*DD})\ns_barrier")
    read_frags(0, 0)
    Lloop = k.newlab("loop")
    k.lab(Lloop)
    read_frags(1, 1)
    k.e(f"s_add_u32 s{sSLOT}, s{sSLOT}, 1\ns_cmp_eq_u32 s{sSLOT}, {NSL}\ns_cselect_b32 s{sDELTA}, s{sWRAP}, {SLOT}\ns_cselect_b32 s{sSLOT}, 0, s{sSLOT}")
    k.e(f"s_cmp_lt_u32 s{sC}, {NST-NSL}\ns_cselect_b32 s{SA+2}, s{sNRA}, 0\ns_cselect_b32 s{SB+2}, s{sNRB}, 0")
    k.e(f"s_waitcnt lgkmcnt({min(NRD,15)})")
    for j in range(nAaddr):
        k.e(f"v_add_u32 v{vAA+j}, s{sDELTA}, v{vAA+j}")
        if big: k.e(f"v_add_u32 v{vAA2+j}, s{sDELTA}, v{vAA2+j}")
    for j in range(nBaddr): k.e(f"v_add_u32 v{vBA+j}, s{sDELTA}, v{vBA+j}")
    mfmas(0)
    k.e(f"s_waitcnt vmcnt({(NSL-2)*DD}) lgkmcnt(0)\ns_barrier")
    issue_dma()
    k.e(f"s_add_u32 s{sPF}, s{sPF}, s{sDELTA}")
    read_frags(0, 0)
    mfmas(1)
    k.e(f"s_add_u32 s{sC}, s{sC}, 1\ns_cmp_lt_u32 s{sC}, {NST}\ns_cbranch_scc1 {Lloop}")

    k.e("s_waitcnt lgkmcnt(0)")
    if ln:
        k.e("s_nop 2")
        for r in [vSUM, vSUM+1, vSQ, vSQ+1, vCS, vCS+1]:
            k.e(f"v_mov_b32 v{vT}, v{r}\ns_nop 1\nv_permlane32_swap_b32 v{r}, v{vT}\ns_nop 0\nv_add_f32 v{r}, v{r}, v{vT}")
            k.e(f"v_mov_b32 v{vT}, v{r}\ns_nop 1\nv_permlane16_swap_b32 v{r}, v{vT}\ns_nop 0\nv_add_f32 v{r}, v{r}, v{vT}")
        k.e(f"s_lshl_b32 s{sT}, s{sWM}, 6\ns_lshl_b32 s{sT2}, s{sWN}, 5\ns_add_u32 s{sT}, s{sT}, s{sT2}\nv_add_u32 v{vT}, s{sT}, v{vL16}\nv_lshlrev_b32 v{vT}, 3, v{vT}")
        k.e(f"v_mov_b32 v{vPK}, v{vSUM}\nv_mov_b32 v{vPK+1}, v{vSQ}\nv_mov_b32 v{vPK+2}, v{vSUM+1}\nv_mov_b32 v{vPK+3}, v{vSQ+1}")
        k.e(f"v_add_u32 v{vT}, {XCH}, v{vT}")
        k.e(f"ds_write_b64 v{vT}, {vr(vPK,2)}\nds_write_b64 v{vT}, {vr(vPK+2,2)} offset:128")
        k.e(f"s_lshl_b32 s{sT}, s{sWN}, 6\ns_lshl_b32 s{sT2}, s{sWM}, 5\ns_add_u32 s{sT}, s{sT}, s{sT2}\nv_add_u32 v{vT2}, s{sT}, v{vL16}\nv_lshlrev_b32 v{vT2}, 2, v{vT2}")
        k.e(f"v_add_u32 v{vT2}, {XCH+1024}, v{vT2}")
        k.e(f"ds_write_b32 v{vT2}, v{vCS}\nds_write_b32 v{vT2}, v{vCS+1} offset:64")
        k.e("s_waitcnt lgkmcnt(0)\ns_barrier")
        k.e(f"s_lshl_b32 s{sT}, s{sWN}, 9\nv_sub_u32 v{vT3}, v{vT}, s{sT}")
        for mt in range(MT):
            if mt < 2: k.e(f"ds_read_b64 {vr(vST+2*mt,2)}, v{vT} offset:{128*mt}")
            else:      k.e(f"ds_read_b64 {vr(vST+2*mt,2)}, v{vT3} offset:{128*mt}")
        k.e(f"s_lshl_b32 s{sT}, s{sWN}, 8\ns_lshl_b32 s{sT2}, s{sWM}, 7\ns_add_u32 s{sT3}, s{sT}, s{sT2}\ns_sub_u32 s{sT}, s{sT}, s{sT2}")
        k.e(f"v_lshlrev_b32 v{vT2}, 4, v{vG}\nv_add_u32 v{vT2}, {XCH+1024}, v{vT2}\nv_add_u32 v{vT3}, s{sT}, v{vT2}\nv_add_u32 v{vT2}, s{sT3}, v{vT2}")
        for nt in range(NT):
            k.e(f"ds_read_b128 {vr(vCSR+4*nt,4)}, v{vT2 if nt < 2 else vT3} offset:{64*nt}")
        if epi == "qkv":
            k.e(f"s_cmp_lt_u32 s{sCB}, 5\ns_cselect_b32 s{sSC}, 0x{f2u(QSCALE):x}, 1.0")
        k.e(f"s_mov_b32 s{sT}, 0x{f2u(1.0/D):x}\ns_mov_b32 s{sT2}, 0x{f2u(1e-5):x}")
        k.e("s_waitcnt lgkmcnt(0)")
        for mt in range(MT):
            s_, q_ = vST + 2 * mt, vST + 2 * mt + 1
            nm, rs = vNM + 2 * mt, vRS + 2 * mt
            k.e(f"v_mul_f32 v{s_}, s{sT}, v{s_}")
            k.e(f"v_mul_f32 v{q_}, s{sT}, v{q_}")
            k.e(f"v_fma_f32 v{q_}, -v{s_}, v{s_}, v{q_}")
            k.e(f"v_max_f32 v{q_}, 0, v{q_}\nv_add_f32 v{q_}, s{sT2}, v{q_}\nv_rsq_f32 v{rs}, v{q_}\nv_sub_f32 v{nm}, 0, v{s_}")
            if epi == "qkv": k.e(f"v_mul_f32 v{rs}, s{sSC}, v{rs}")
        k.e(f"v_and_b32 v{vT}, 1, v{vG}\nv_lshlrev_b32 v{vT}, 1, v{vT}\nv_lshrrev_b32 v{vT2}, 1, v{vG}\nv_add_u32 v{vT}, v{vT}, v{vT2}\nv_mul_u32_u24 v{vT}, {PL}, v{vT}")
        k.e(f"v_lshl_add_u32 v{vT}, v{vL16}, 4, v{vT}")
        k.e(f"s_lshl_b32 s{sT}, s{sWM}, 6\ns_add_u32 s{sT}, s{sT}, s{sROW0}\ns_lshl_b32 s{sT}, s{sT}, 4\ns_lshl_b32 s{sT2}, s{sWN}, 9")
        k.e(f"s_add_u32 s{sT3}, s{sT}, s{sT2}\ns_sub_u32 s{sT}, s{sT}, s{sT2}")
        for mt in range(MT):
            k.e(f"v_add_u32 v{vSTA+mt}, s{sT3 if mt < 2 else sT}, v{vT}\nv_add_u32 v{vSTA+mt}, {256*mt}, v{vSTA+mt}")
        k.e(f"s_lshr_b32 s{sT}, s{sCOL0}, 3\ns_lshl_b32 s{sT2}, s{sWN}, 3\ns_add_u32 s{sT}, s{sT}, s{sT2}\ns_lshl_b32 s{sT2}, s{sWM}, 2")
        k.e(f"s_add_u32 s{sOOF}, s{sT}, s{sT2}\ns_mul_i32 s{sOOF}, s{sOOF}, {PL}")
        k.e(f"s_sub_u32 s{sOOF+1}, s{sT}, s{sT2}\ns_add_u32 s{sOOF+1}, s{sOOF+1}, 4\ns_mul_i32 s{sOOF+1}, s{sOOF+1}, {PL}")
        for mt in range(MT):
            for np_ in range(2):
                pk = vPK + 4 * ((mt * 2 + np_) % 2)
                for j in range(2):
                    nt = 2 * np_ + j
                    a = acc(mt, nt)
                    for h in range(2):
                        k.e(f"v_pk_fma_f32 {vr(a+2*h,2)}, {vr(vCSR+4*nt+2*h,2)}, {vr(vNM+2*mt,2)}, {vr(a+2*h,2)} op_sel_hi:[1,0,1]")
                    for h in range(2):
                        k.e(f"v_pk_mul_f32 {vr(a+2*h,2)}, {vr(a+2*h,2)}, {vr(vRS+2*mt,2)} op_sel_hi:[1,0]")
                    k.e(f"v_cvt_pk_bf16_f32 v{pk+2*j}, v{a}, v{a+1}\nv_cvt_pk_bf16_f32 v{pk+2*j+1}, v{a+2}, v{a+3}")
                    if epi == "ffn1":
                        k.e(f"v_pk_max_i16 v{pk+2*j}, v{pk+2*j}, 0\nv_pk_max_i16 v{pk+2*j+1}, v{pk+2*j+1}, 0")
                k.e("s_nop 1")
                k.e(f"v_permlane16_swap_b32 v{pk}, v{pk+2}\nv_permlane16_swap_b32 v{pk+1}, v{pk+3}")
                k.e("s_nop 0")
                k.e(f"buffer_store_dwordx4 {vr(pk,4)}, v{vSTA+mt}, {sr(SO,4)}, s{sOOF+np_} offen")
    else:
        k.e("s_nop 7")
        k.e(f"s_lshl_b32 s{sT}, s{sW}, 4\ns_add_u32 s{sT}, s{sT}, s{sROW0}\nv_add_u32 v{vT}, s{sT}, v{vL16}")
        if epi == "res_planar":
            k.e(f"v_and_b32 v{vT2}, 1, v{vG}\nv_lshlrev_b32 v{vT2}, 1, v{vT2}\nv_lshrrev_b32 v{vT3}, 1, v{vG}\nv_add_u32 v{vT2}, v{vT2}, v{vT3}\nv_mul_u32_u24 v{vT2}, {PL}, v{vT2}")
            k.e(f"v_lshl_add_u32 v{vSTA}, v{vT}, 4, v{vT2}")
            k.e(f"v_mul_u32_u24 v{vT3}, {PL}, v{vT3}\nv_lshl_add_u32 v{vT3}, v{vT}, 4, v{vT3}\nv_and_b32 v{vT2}, 1, v{vG}\nv_lshl_add_u32 v{vT3}, v{vT2}, 3, v{vT3}")
            k.e(f"s_lshr_b32 s{sT}, s{sCOL0}, 3\ns_mul_i32 s{sOOF}, s{sT}, {PL}\ns_add_u32 s{sOOF+1}, s{sOOF}, {4*PL}\ns_add_u32 s{sOOF+2}, s{sOOF}, {8*PL}")
        else:
            k.e(f"v_mul_u32_u24 v{vT}, 1280, v{vT}\nv_and_b32 v{vT2}, 1, v{vG}\nv_lshl_add_u32 v{vSTA}, v{vT2}, 5, v{vT}\nv_lshrrev_b32 v{vT3}, 1, v{vG}\nv_lshl_add_u32 v{vSTA}, v{vT3}, 4, v{vSTA}")
            k.e(f"v_lshl_add_u32 v{vT3}, v{vG}, 3, v{vT}")
            k.e(f"s_lshl_b32 s{sOOF}, s{sCOL0}, 1\ns_add_u32 s{sOOF+1}, s{sOOF}, 64\ns_add_u32 s{sOOF+2}, s{sOOF}, 128")
        for nt in range(NT):
            a = acc(0, nt); r = vRES + 2 * nt
            pk = vPK + 2 * (nt % 2) + 4 * ((nt // 2) % 2)
            k.e(f"v_lshlrev_b32 v{vT}, 16, v{r}\nv_and_b32 v{vT2}, 0xffff0000, v{r}\nv_add_f32 v{a}, v{a}, v{vT}\nv_add_f32 v{a+1}, v{a+1}, v{vT2}")
            k.e(f"v_lshlrev_b32 v{vT}, 16, v{r+1}\nv_and_b32 v{vT2}, 0xffff0000, v{r+1}\nv_add_f32 v{a+2}, v{a+2}, v{vT}\nv_add_f32 v{a+3}, v{a+3}, v{vT2}")
            k.e(f"v_cvt_pk_bf16_f32 v{pk}, v{a}, v{a+1}\nv_cvt_pk_bf16_f32 v{pk+1}, v{a+2}, v{a+3}")
            if nt % 2 == 1:
                p0 = pk - 2
                k.e(f"s_nop 1\nv_permlane16_swap_b32 v{p0}, v{p0+2}\nv_permlane16_swap_b32 v{p0+1}, v{p0+3}\ns_nop 0")
                k.e(f"buffer_store_dwordx4 {vr(p0,4)}, v{vSTA}, {sr(SO,4)}, s{sOOF+nt//2} offen")
            elif nt == NT - 1:
                k.e(f"buffer_store_dwordx2 {vr(pk,2)}, v{vT3}, {sr(SO,4)}, s{sOOF+2} offen")
    k.lab(Lend)
    k.e("s_endpgm")
    return k, nv, grid, 256, lds

def gen_attn(name):
    k = Kern(name)
    KPS = 6144; VPS = 6272; VB = 5 * KPS
    lds = VB + 5 * VPS + 8192
    NEG = 0xf149f2ca
    SQ, SO = 4, 8
    sW, sHP, sQB, sHH, sQ0, sKB0, sT, sT2, sT3, sT4, sNT = range(20, 31)
    v = 1
    def alloc(n, al=1):
        nonlocal v
        v = (v + al - 1) // al * al
        b = v; v += n; return b
    vLANE = alloc(1); vG = alloc(1); vL16 = alloc(1); vT = alloc(1); vT2 = alloc(1); vT3 = alloc(1)
    vL16x = alloc(1); vKA = alloc(1); vVA = alloc(2); vOA = alloc(2)
    vQ = alloc(8, 4); vKF = alloc(12, 4); vMD = alloc(4, 4); vMF = alloc(4, 4)
    vVF = alloc(16, 4); vO = alloc(16, 4); vM = alloc(4, 2); vPK = alloc(4, 2)
    vS = alloc(144, 4)
    nv = v
    def Sreg(j, qt): return vS + (j * 2 + qt) * 4
    Lend = k.newlab("end")
    k.e(f"s_cmp_ge_u32 s2, 256\ns_cbranch_scc1 {Lend}")
    k.e("s_load_dwordx2 s[60:61], s[0:1], 64")
    k.e(f"v_and_b32 v{vLANE}, 63, v0\nv_lshrrev_b32 v{vT}, 6, v0\nv_lshrrev_b32 v{vG}, 4, v{vLANE}\nv_and_b32 v{vL16}, 15, v{vLANE}")
    k.e(f"v_readfirstlane_b32 s{sW}, v{vT}")
    k.e(f"s_and_b32 s{sT}, s2, 7\ns_lshl_b32 s{sHP}, s{sT}, 1\ns_bfe_u32 s{sT}, s2, 0x10003\ns_add_u32 s{sHP}, s{sHP}, s{sT}\ns_lshr_b32 s{sQB}, s2, 4")
    k.e(f"s_and_b32 s{sHH}, s{sW}, 1\ns_lshr_b32 s{sT}, s{sW}, 1\ns_lshl_b32 s{sT}, s{sT}, 5\ns_lshl_b32 s{sQ0}, s{sQB}, 7")
    k.e(f"s_sub_u32 s{sKB0}, s{sQ0}, 256\ns_add_u32 s{sQ0}, s{sQ0}, s{sT}")
    k.e(f"v_lshlrev_b32 v{vL16x}, 4, v{vLANE}")
    k.e(f"v_mov_b32 v{vKF}, 0x3f803f80\nv_mov_b32 v{vKF+1}, v{vKF}\nv_mov_b32 v{vKF+2}, v{vKF}\nv_mov_b32 v{vKF+3}, v{vKF}")
    k.e(f"v_lshlrev_b32 v{vT}, 4, v0\nds_write_b128 v{vT}, {vr(vKF,4)} offset:{VB+5*VPS}")
    k.e("s_waitcnt lgkmcnt(0)")
    srd(k, SQ, P_WS, WS_QKV, 240 * PL)
    srd(k, SO, P_WS, WS_O, 80 * PL)
    for sec, cg0 in ((0, 80), (1, 160)):
        for i in range(4):
            k.e(f"s_add_u32 s{sT}, s{sW}, {8*i}\ns_min_u32 s{sT}, s{sT}, 29\ns_mul_i32 s{sT2}, s{sT}, 43\ns_lshr_b32 s{sT2}, s{sT2}, 8")
            k.e(f"s_mul_i32 s{sT3}, s{sT2}, 6\ns_sub_u32 s{sT3}, s{sT}, s{sT3}")
            k.e(f"s_mul_i32 s{sT4}, s{sHP}, 5\ns_add_u32 s{sT4}, s{sT4}, s{sT2}\ns_add_u32 s{sT4}, s{sT4}, {cg0}\ns_mul_i32 s{sT4}, s{sT4}, {PL}")
            k.e(f"s_lshl_b32 s{sT}, s{sT3}, 6\ns_add_u32 s{sT}, s{sT}, s{sKB0}\ns_lshl_b32 s{sT}, s{sT}, 4\ns_add_u32 s{sT4}, s{sT4}, s{sT}")
            k.e(f"s_mul_i32 s{sT2}, s{sT2}, {KPS if sec == 0 else VPS}\ns_lshl_b32 s{sT3}, s{sT3}, 10\ns_add_u32 s{sT2}, s{sT2}, s{sT3}")
            k.e(f"s_add_u32 m0, s{sT2}, {0 if sec == 0 else VB}\ns_nop 0\nbuffer_load_dwordx4 v{vL16x}, {sr(SQ,4)}, s{sT4} offen lds")
        if sec == 0:
            k.e(f"v_cmp_eq_u32 vcc, 2, v{vG}\nv_and_b32 v{vT}, 1, v{vG}\ns_mul_i32 s{sT}, s{sHH}, 3\nv_add_u32 v{vT}, s{sT}, v{vT}")
            k.e(f"v_cndmask_b32 v{vT}, v{vT}, 2, vcc")
            k.e(f"v_mul_u32_u24 v{vKA}, {KPS}, v{vT}")
            k.e(f"s_mul_i32 s{sT}, s{sHP}, 5\nv_add_u32 v{vT}, s{sT}, v{vT}\nv_mul_u32_u24 v{vT}, {PL}, v{vT}")
            k.e(f"v_add_u32 v{vT2}, s{sQ0}, v{vL16}\nv_lshl_add_u32 v{vT}, v{vT2}, 4, v{vT}")
            k.e(f"buffer_load_dwordx4 {vr(vQ,4)}, v{vT}, {sr(SQ,4)}, 0 offen\nbuffer_load_dwordx4 {vr(vQ+4,4)}, v{vT}, {sr(SQ,4)}, 0 offen offset:256")
    k.e(f"s_lshr_b32 s{sT}, s{sW}, 1\ns_lshl_b32 s{sT}, s{sT}, 9\nv_lshl_add_u32 v{vKA}, v{vL16}, 4, v{vKA}\nv_add_u32 v{vKA}, s{sT}, v{vKA}")
    k.e(f"v_lshrrev_b32 v{vT}, 2, v{vL16}\nv_lshl_add_u32 v{vT}, v{vG}, 2, v{vT}\nv_lshlrev_b32 v{vT}, 4, v{vT}\nv_add_u32 v{vT}, s{sT}, v{vT}\nv_add_u32 v{vT}, {VB}, v{vT}")
    k.e(f"v_and_b32 v{vT2}, 3, v{vL16}\ns_mul_i32 s{sT}, s{sHH}, 5\nv_add_u32 v{vT3}, s{sT}, v{vT2}")
    k.e(f"v_lshrrev_b32 v{vVA}, 1, v{vT3}\nv_mul_u32_u24 v{vVA}, {VPS}, v{vVA}\nv_and_b32 v{vT3}, 1, v{vT3}\nv_lshl_add_u32 v{vVA}, v{vT3}, 3, v{vVA}\nv_add_u32 v{vVA}, v{vVA}, v{vT}")
    k.e(f"s_add_u32 s{sT}, s{sT}, 4\nv_mov_b32 v{vT3}, s{sT}\nv_cmp_eq_u32 vcc, 0, v{vT2}\ns_nop 1\nv_cndmask_b32 v{vT3}, 10, v{vT3}, vcc")
    k.e(f"v_lshrrev_b32 v{vVA+1}, 1, v{vT3}\nv_mul_u32_u24 v{vVA+1}, {VPS}, v{vVA+1}\nv_and_b32 v{vT3}, 1, v{vT3}\nv_lshl_add_u32 v{vVA+1}, v{vT3}, 3, v{vVA+1}\nv_add_u32 v{vVA+1}, v{vVA+1}, v{vT}")
    k.e(f"s_mul_i32 s{sT}, s{sHP}, 10\ns_mul_i32 s{sT2}, s{sHH}, 5\ns_add_u32 s{sT}, s{sT}, s{sT2}\nv_add_u32 v{vT}, s{sT}, v{vG}")
    k.e(f"v_add_u32 v{vT3}, s{sQ0}, v{vL16}\nv_lshlrev_b32 v{vT3}, 4, v{vT3}")
    k.e(f"v_lshrrev_b32 v{vOA}, 1, v{vT}\nv_mul_u32_u24 v{vOA}, {PL}, v{vOA}\nv_and_b32 v{vT}, 1, v{vT}\nv_lshl_add_u32 v{vOA}, v{vT}, 3, v{vOA}\nv_add_u32 v{vOA}, v{vOA}, v{vT3}")
    k.e(f"s_add_u32 s{sT}, s{sT}, 4\ns_lshr_b32 s{sT2}, s{sT}, 1\ns_mul_i32 s{sT2}, s{sT2}, {PL}\ns_and_b32 s{sT}, s{sT}, 1\ns_lshl_b32 s{sT}, s{sT}, 3\ns_add_u32 s{sT}, s{sT}, s{sT2}")
    k.e(f"v_add_u32 v{vOA+1}, s{sT}, v{vT3}\nv_mov_b32 v{vT}, 0x40000000\nv_cmp_eq_u32 vcc, 0, v{vG}\ns_nop 1\nv_cndmask_b32 v{vOA+1}, v{vT}, v{vOA+1}, vcc")
    k.e(f"v_mov_b32 v{vT}, 0x{NEG:x}\nv_lshlrev_b32 v{vT2}, 2, v{vG}")
    for r in range(4):
        k.e(f"v_add_u32 v{vT3}, {r}, v{vT2}\nv_cmp_le_u32 vcc, v{vT3}, v{vL16}\ns_nop 1\nv_cndmask_b32 v{vMD+r}, v{vT}, 0, vcc\nv_cndmask_b32 v{vMF+r}, 0, v{vT}, vcc")
    k.e(f"s_sub_i32 s{sNT}, 256, s{sQ0}\ns_max_i32 s{sNT}, s{sNT}, 0\ns_lshr_b32 s{sNT}, s{sNT}, 4")
    for i in range(16): k.e(f"v_mov_b32 v{vO+i}, 0")
    k.e("s_waitcnt vmcnt(4)")
    k.e(f"s_lshl_b32 s{sT}, s{sHH}, 1\ns_sub_u32 s{sT}, 3, s{sT}")
    k.e(f"s_sub_u32 s{sT}, 3, s{sHH}\ns_add_u32 s{sT2}, s{sHH}, 2")
    k.e(f"v_cmp_le_u32 vcc, s{sT}, v{vG}\nv_cmp_le_u32 s[32:33], s{sT2}, v{vG}\ns_nop 1")
    for qt in range(2):
        k.e(f"v_cndmask_b32 v{vQ+4*qt}, v{vQ+4*qt}, 0, vcc\nv_cndmask_b32 v{vQ+4*qt+1}, v{vQ+4*qt+1}, 0, vcc")
        k.e(f"v_cndmask_b32 v{vQ+4*qt+2}, v{vQ+4*qt+2}, 0, s[32:33]\nv_cndmask_b32 v{vQ+4*qt+3}, v{vQ+4*qt+3}, 0, s[32:33]")
    k.e("s_barrier")
    skips = []
    k.e(f"ds_read_b128 {vr(vKF,4)}, v{vKA}\nds_read_b128 {vr(vKF+4,4)}, v{vKA} offset:256")
    for j in range(18):
        if j + 2 < 18: k.e(f"ds_read_b128 {vr(vKF+4*((j+2)%3),4)}, v{vKA} offset:{256*(j+2)}")
        k.e(f"s_waitcnt lgkmcnt({min(2, 17-j)})")
        kf = vKF + 4 * (j % 3)
        if j < 16:
            Ls = k.newlab("skip"); Lb = k.newlab("back")
            k.e(f"s_cmp_gt_u32 s{sNT}, {j}\ns_cbranch_scc1 {Ls}")
            skips.append((Ls, Lb, j))
        for qt in range(2):
            if (qt == 0 and j == 17) or (qt == 1 and j == 0): continue
            c = "0"
            if j == qt: c = vr(vMF, 4)
            if j == 16 + qt: c = vr(vMD, 4)
            k.e(f"v_mfma_f32_16x16x32_bf16 {vr(Sreg(j,qt),4)}, {vr(kf,4)}, {vr(vQ+4*qt,4)}, {c}")
        if j < 16: k.lab(Lb)
    for qt in range(2):
        tiles = list(range(0, 17)) if qt == 0 else list(range(1, 18))
        m = vM + 2 * qt
        first = True
        for j in tiles:
            s_ = Sreg(j, qt)
            if j >= 16 and qt == 0 and j == 16: k.e("s_nop 7")
            if qt == 1 and j == 17: k.e("s_nop 1")
            if first:
                k.e(f"v_max3_f32 v{m}, v{s_}, v{s_+1}, v{s_+2}\nv_max_f32 v{m}, v{m}, v{s_+3}"); first = False
            else:
                k.e(f"v_max3_f32 v{m}, v{m}, v{s_}, v{s_+1}\nv_max3_f32 v{m}, v{m}, v{s_+2}, v{s_+3}")
        k.e(f"v_mov_b32 v{vT}, v{m}\ns_nop 1\nv_permlane32_swap_b32 v{m}, v{vT}\ns_nop 0\nv_max_f32 v{m}, v{m}, v{vT}")
        k.e(f"v_mov_b32 v{vT}, v{m}\ns_nop 1\nv_permlane16_swap_b32 v{m}, v{vT}\ns_nop 0\nv_max_f32 v{m}, v{m}, v{vT}")
    k.e("s_waitcnt vmcnt(0)\ns_barrier")
    def vread(p):
        b = vVF + 8 * (p % 2)
        for dt in range(2):
            for sec in range(2):
                k.e(f"ds_read_b64_tr_b16 {vr(b+4*dt+2*sec,2)}, v{vVA+dt} offset:{512*p+256*sec}")
    vread(0)
    for p in range(9):
        if p + 1 < 9: vread(p + 1)
        for qt in range(2):
            m = vM + 2 * qt
            for jj in range(2):
                j = 2 * p + jj
                s_ = Sreg(j, qt)
                absent = (qt == 0 and j == 17) or (qt == 1 and j == 0)
                if absent: continue
                for h in range(2):
                    k.e(f"v_pk_add_f32 {vr(s_+2*h,2)}, {vr(s_+2*h,2)}, {vr(m,2)} op_sel_hi:[1,0] neg_lo:[0,1] neg_hi:[0,1]")
                for r in range(4): k.e(f"v_exp_f32 v{s_+r}, v{s_+r}")
            d = Sreg(2 * p, qt); s1 = Sreg(2 * p + 1, qt)
            k.e("s_nop 0")
            if qt == 1 and p == 0:
                k.e(f"v_mov_b32 v{d}, 0\nv_mov_b32 v{d+1}, 0")
            else:
                k.e(f"v_cvt_pk_bf16_f32 v{d}, v{d}, v{d+1}\nv_cvt_pk_bf16_f32 v{d+1}, v{d+2}, v{d+3}")
            if qt == 0 and p == 8:
                k.e(f"v_mov_b32 v{d+2}, 0\nv_mov_b32 v{d+3}, 0")
            else:
                k.e(f"v_cvt_pk_bf16_f32 v{d+2}, v{s1}, v{s1+1}\nv_cvt_pk_bf16_f32 v{d+3}, v{s1+2}, v{s1+3}")
        k.e(f"s_waitcnt lgkmcnt({4 if p + 1 < 9 else 0})")
        b = vVF + 8 * (p % 2)
        for qt in range(2):
            for dt in range(2):
                o = vO + (qt * 2 + dt) * 4
                k.e(f"v_mfma_f32_16x16x32_bf16 {vr(o,4)}, {vr(b+4*dt,4)}, {vr(Sreg(2*p,qt),4)}, {vr(o,4)}")
    k.e("s_nop 7")
    for qt in range(2):
        o0 = vO + qt * 8; o1 = o0 + 4
        k.e(f"v_mov_b32 v{vT}, v{o1}\nv_mov_b32 v{vT2}, v{o1}\ns_nop 1\nv_permlane16_swap_b32 v{vT}, v{vT2}\ns_nop 0\nv_rcp_f32 v{vT2}, v{vT2}\ns_nop 0")
        for r in range(4): k.e(f"v_mul_f32 v{o0+r}, v{o0+r}, v{vT2}")
        for r in range(4): k.e(f"v_mul_f32 v{o1+r}, v{o1+r}, v{vT2}")
        k.e(f"v_cvt_pk_bf16_f32 v{o0}, v{o0}, v{o0+1}\nv_cvt_pk_bf16_f32 v{o0+1}, v{o0+2}, v{o0+3}")
        k.e(f"v_cvt_pk_bf16_f32 v{o1}, v{o1}, v{o1+1}\nv_cvt_pk_bf16_f32 v{o1+1}, v{o1+2}, v{o1+3}")
        k.e(f"buffer_store_dwordx2 {vr(o0,2)}, v{vOA}, {sr(SO,4)}, 0 offen offset:{256*qt}")
        k.e(f"buffer_store_dwordx2 {vr(o1,2)}, v{vOA+1}, {sr(SO,4)}, 0 offen offset:{256*qt}")
    k.lab(Lend)
    k.e("s_endpgm")
    for Ls, Lb, j in skips:
        k.lab(Ls)
        for qt in range(2):
            if qt == 1 and j == 0: continue
            for r in range(4): k.e(f"v_mov_b32 v{Sreg(j,qt)+r}, 0x{NEG:x}")
        k.e(f"s_branch {Lb}")
    return k, nv, 256, 512, lds

HEADER = """; Kernarg layout for this problem (72 bytes, ptrs only, base s[0:1]):
;   offset   8: d_in[1] A_wqkv  shape=(640, 1920) dtype=bfloat16
;   offset  64: d_ws      268435456 bytes workspace
"""

def main(out):
    ks = []
    ks.append(gen_gemm("qkv_kernel", dict(big=True, K=D, N=3*D, amode="row", epi="qkv", slots=4,
              A=(P_X, 0, S*D*2), B=P_WQKV, O=("ws", WS_QKV, 240*PL))))
    ks.append(gen_attn("attn_kernel"))
    ks.append(gen_gemm("wo_kernel", dict(big=False, K=D, N=D, amode="planar", epi="res_planar", slots=7,
              A=("ws", WS_O, 80*PL), B=P_WO, O=("ws", WS_H, 80*PL), R=(P_X, 0, S*D*2), rmode="row")))
    ks.append(gen_gemm("ffn1_kernel", dict(big=True, K=D, N=DFF, amode="planar", epi="ffn1", slots=4,
              A=("ws", WS_H, 80*PL), B=P_W1, O=("ws", WS_H1, 216*PL))))
    ks.append(gen_gemm("ffn2_kernel", dict(big=False, K=DFF, N=D, amode="planar", epi="res_out", slots=7,
              A=("ws", WS_H1, 216*PL), B=P_W2, O=(P_OUT, 0, S*D*2), R=("ws", WS_H, 80*PL), rmode="planar")))
    txt = HEADER
    for k, nv, grid, blk, lds in ks:
        txt += f"; @launch kernel={k.name} grid=({grid},1,1) block=({blk},1,1) lds={lds}\n"
    txt += '.amdgcn_target "amdgcn-amd-amdhsa--gfx950"\n.text\n'
    for k, nv, grid, blk, lds in ks: txt += k.text(nv)
    txt += '.section .rodata,"a"\n'
    for k, nv, grid, blk, lds in ks: txt += k.desc(nv)
    open(out, "w").write(txt)
    for k, nv, grid, blk, lds in ks: print(k.name, "vgprs", nv, "grid", grid, "lds", lds, "lines", len(k.L))

if __name__ == "__main__":
    main(sys.argv[1] if len(sys.argv) > 1 else "sequential_preLN__sliding_block__dense_activation_relu__prompt.s")
```

```python
import sys, math, os
ABL = os.environ.get('ABL', '')

S = 2048; D = 640; DFF = 1728
PL = S * 16
WS_QKV = 0
WS_O   = 0x800000
WS_H   = 0xB00000
WS_H1  = 0xE00000
QSCALE = math.log2(math.e) * (20 ** -0.5)

import struct
def f2u(f): return struct.unpack("<I", struct.pack("<f", f))[0]

class Kern:
    def __init__(self, name):
        self.name = name; self.L = []; self.nv = 0; self.ns = 0; self.uid = 0
    def e(self, s):
        for ln in s.strip("\n").split("\n"):
            self.L.append("  " + ln.strip())
    def lab(self, l): self.L.append(f"{l}:")
    def stamp(self, i):
        if 'stamp' not in ABL: return
        self.e(f"s_memtime s[{80+2*i}:{81+2*i}]")
        if i == 0: self.e("s_memrealtime s[96:97]")
    def stamp_out(self, n):
        if 'stamp' not in ABL: return
        self.e("s_memrealtime s[98:99]\ns_load_dwordx2 s[58:59], s[0:1], 56\ns_waitcnt lgkmcnt(0) vmcnt(0)")
        self.e(f"s_memtime s[{80+2*n}:{81+2*n}]\ns_waitcnt lgkmcnt(0)")
        self.e("s_mov_b32 s76, s58\ns_and_b32 s77, s59, 0xffff\ns_mov_b32 s78, 256\ns_mov_b32 s79, 0x20000")
        self.e("s_cmp_lg_u32 s2, 17\ns_cselect_b32 s78, 0, s78\nv_cmp_eq_u32 vcc, 0, v0\ns_and_saveexec_b64 s[74:75], vcc")
        for i in range(n + 1):
            self.e(f"s_sub_u32 s73, s{80+2*i}, s80\nv_mov_b32 v1, s73\nv_mov_b32 v2, {4*i}\nbuffer_store_dword v1, v2, s[76:79], 0 offen")
        self.e(f"s_sub_u32 s73, s98, s96\nv_mov_b32 v1, s73\nv_mov_b32 v2, 60\nbuffer_store_dword v1, v2, s[76:79], 0 offen")
        self.e("s_mov_b64 exec, s[74:75]")
    def newlab(self, p):
        self.uid += 1
        return f"L_{self.name}_{p}_{self.uid}"
    def text(self, vgprs, sgprs=96):
        acc = (vgprs + 3) // 4 * 4
        hdr = f""".globl {self.name}
.p2align 8
.type {self.name},@function
{self.name}:
"""
        return hdr + "\n".join(self.L) + "\n"
    def desc(self, vgprs, sgprs=102):
        acc = (vgprs + 3) // 4 * 4
        return f""".p2align 6
.amdhsa_kernel {self.name}
  .amdhsa_next_free_vgpr {vgprs}
  .amdhsa_next_free_sgpr {sgprs}
  .amdhsa_accum_offset {acc}
  .amdhsa_group_segment_fixed_size 0
  .amdhsa_kernarg_size 72
  .amdhsa_user_sgpr_count 2
  .amdhsa_user_sgpr_kernarg_segment_ptr 1
  .amdhsa_system_sgpr_workgroup_id_x 1
.end_amdhsa_kernel
"""

def vr(b, n=1): return f"v{b}" if n == 1 else f"v[{b}:{b+n-1}]"
def sr(b, n=1): return f"s{b}" if n == 1 else f"s[{b}:{b+n-1}]"

P_X, P_WQKV, P_WO, P_W1, P_W2, P_OUT, P_WS = 44, 46, 48, 52, 54, 56, 60

def srd(k, d, ptr, off, nbytes):
    if off:
        k.e(f"s_add_u32 s{d}, s{ptr}, 0x{off:x}\ns_addc_u32 s{d+1}, s{ptr+1}, 0")
        k.e(f"s_and_b32 s{d+1}, s{d+1}, 0xffff")
    else:
        k.e(f"s_mov_b32 s{d}, s{ptr}\ns_and_b32 s{d+1}, s{ptr+1}, 0xffff")
    k.e(f"s_mov_b32 s{d+2}, 0x{nbytes:x}\ns_mov_b32 s{d+3}, 0x20000")

def gen_gemm(name, cfg):
    k = Kern(name)
    big = cfg["big"]; Kd = cfg["K"]; N = cfg["N"]; amode = cfg["amode"]; epi = cfg["epi"]
    NSL = cfg["slots"]
    if big: BM, BN, WM, WN, MT, NT = 128, 128, 2, 2, 4, 4
    else:   BM, BN, WM, WN, MT, NT = 64, 80, 4, 1, 1, 5
    NST = Kd // 64
    ldb2 = N * 2
    ncb = (N + BN - 1) // BN
    nrb = S // BM
    RBX = nrb // 8
    grid = nrb * ncb
    ASZ = BM * 128
    BSZ = 64 * 256 if big else 12 * 1024
    SLOT = ASZ + BSZ
    DA = ASZ // 1024 // 4
    DB = 4 if big else 3
    DD = DA + DB
    XCH = NSL * SLOT
    lds = XCH + (2048 if epi in ("qkv", "ffn1") else 0)
    ln = epi in ("qkv", "ffn1")
    PS = BM * 16

    SA, SB, SO, SR = 4, 8, 12, 16
    sW, sRB, sCB, sROW0, sCOL0, sC, sKA, sKB, sPF, sDELTA, sSLOT, sNRA, sNRB = range(20, 33)
    sDST = 33
    sT = 62; sT2 = 63; sT3 = 64; sWM = 65; sWN = 66; sONE = 67; sSC = 68; sWRAP = 69; sOOF = 70
    v = 1
    def alloc(n, al=1):
        nonlocal v
        v = (v + al - 1) // al * al
        b = v; v += n; return b
    vLANE = alloc(1); vG = alloc(1); vL16 = alloc(1); vT = alloc(1); vT2 = alloc(1); vT3 = alloc(1)
    vDA = alloc(DA); vDB = alloc(DB)
    nAaddr = 2 if amode == "row" else 1
    vAA = alloc(nAaddr)
    nBaddr = NT if big else 1
    vBA = alloc(nBaddr)
    vACC = alloc(MT * NT * 4, 4)
    vXF = [alloc(MT * 4, 4) for _ in range(2)]
    vWF = [alloc(NT * 4, 4) for _ in range(2)]
    if ln:
        vSUM = alloc(2); vSQ = alloc(2); vCS = alloc(2)
        vST = alloc(MT * 2, 2)
        vNM = alloc(MT * 2, 2); vRS = alloc(MT * 2, 2)
        vCSR = alloc(NT * 4, 4)
    else:
        vRES = alloc(NT * 2, 2)
    vSTA = alloc(MT)
    vPK = alloc(8, 4)
    nv = v
    def acc(mt, nt): return vACC + (mt * NT + nt) * 4

    Lend = k.newlab("end")
    k.e(f"s_cmp_ge_u32 s2, {grid}\ns_cbranch_scc1 {Lend}")
    k.stamp(0)
    k.e("s_load_dwordx16 s[44:59], s[0:1], 0\ns_load_dwordx2 s[60:61], s[0:1], 64")
    k.e(f"v_and_b32 v{vLANE}, 63, v0\nv_lshrrev_b32 v{vT}, 6, v0")
    k.e(f"v_lshrrev_b32 v{vG}, 4, v{vLANE}\nv_and_b32 v{vL16}, 15, v{vLANE}")
    k.e(f"v_readfirstlane_b32 s{sW}, v{vT}")
    k.e(f"s_and_b32 s{sT}, s2, 7\ns_lshr_b32 s{sT2}, s2, 3")
    k.e(f"s_mul_i32 s{sRB}, s{sT}, {RBX}\ns_and_b32 s{sT3}, s{sT2}, {RBX-1}\ns_add_u32 s{sRB}, s{sRB}, s{sT3}")
    k.e(f"s_lshr_b32 s{sCB}, s{sT2}, {int(math.log2(RBX))}")
    k.e(f"s_mul_i32 s{sROW0}, s{sRB}, {BM}\ns_mul_i32 s{sCOL0}, s{sCB}, {BN}")
    if big:
        k.e(f"s_lshr_b32 s{sWM}, s{sW}, 1\ns_and_b32 s{sWN}, s{sW}, 1")
    else:
        k.e(f"s_mov_b32 s{sWM}, s{sW}\ns_mov_b32 s{sWN}, 0")
    k.e(f"s_mov_b32 s{sONE}, 0x3f803f80\ns_mov_b32 s{sWRAP}, {-(NSL-1)*SLOT}")

    if amode == "planar":
        if big:
            k.e(f"s_lshr_b32 s{sT}, s{sW}, 1\ns_mul_i32 s{sT}, s{sT}, {PL}\ns_and_b32 s{sT2}, s{sW}, 1\ns_lshl_b32 s{sT2}, s{sT2}, 10")
            k.e(f"s_add_u32 s{sT}, s{sT}, s{sT2}\ns_lshl_b32 s{sT2}, s{sROW0}, 4\ns_add_u32 s{sT}, s{sT}, s{sT2}")
            k.e(f"v_lshl_add_u32 v{vDA}, v{vLANE}, 4, s{sT}")
            for i in range(1, DA): k.e(f"v_add_u32 v{vDA+i}, 0x{2*i*PL:x}, v{vDA}")
        else:
            k.e(f"s_mul_i32 s{sT}, s{sW}, {PL}\ns_lshl_b32 s{sT2}, s{sROW0}, 4\ns_add_u32 s{sT}, s{sT}, s{sT2}")
            k.e(f"v_lshl_add_u32 v{vDA}, v{vLANE}, 4, s{sT}")
            for i in range(1, DA): k.e(f"v_add_u32 v{vDA+i}, 0x{4*i*PL:x}, v{vDA}")
        KA_STEP = 8 * PL
    else:
        k.e(f"s_and_b32 s{sT}, s{sW}, 1\ns_lshl_b32 s{sT}, s{sT}, 2")
        k.e(f"v_add_u32 v{vT}, s{sT}, v{vG}\nv_and_b32 v{vT}, 7, v{vT}\nv_and_b32 v{vT2}, 7, v{vLANE}\nv_xor_b32 v{vT}, v{vT}, v{vT2}\nv_lshlrev_b32 v{vT}, 4, v{vT}")
        k.e(f"v_lshrrev_b32 v{vT2}, 3, v{vLANE}")
        k.e(f"s_lshl_b32 s{sT}, s{sW}, 3\ns_add_u32 s{sT}, s{sT}, s{sROW0}")
        k.e(f"v_add_u32 v{vT2}, s{sT}, v{vT2}\nv_mul_u32_u24 v{vT2}, 1280, v{vT2}\nv_add_u32 v{vDA}, v{vT}, v{vT2}")
        for i in range(1, DA): k.e(f"v_add_u32 v{vDA+i}, {32*i*1280}, v{vDA}")
        KA_STEP = 128
    if big:
        k.e(f"s_lshr_b32 s{sT}, s{sW}, 1\ns_lshl_b32 s{sT}, s{sT}, 2")
        k.e(f"v_add_u32 v{vT}, s{sT}, v{vG}\nv_lshlrev_b32 v{vT}, 1, v{vT}\nv_xor_b32 v{vT}, v{vT}, v{vL16}\nv_lshlrev_b32 v{vT}, 4, v{vT}")
        k.e(f"s_lshl_b32 s{sT}, s{sW}, 2\nv_add_u32 v{vT2}, s{sT}, v{vG}\nv_mul_u32_u24 v{vT2}, {ldb2}, v{vT2}")
        k.e(f"s_lshl_b32 s{sT}, s{sCOL0}, 1\nv_add3_u32 v{vDB}, v{vT}, v{vT2}, s{sT}")
        for i in range(1, DB): k.e(f"v_add_u32 v{vDB+i}, {16*i*ldb2}, v{vDB}")
    else:
        k.e(f"s_mov_b32 s{sT3}, 0x1999999a")
        for i in range(DB):
            k.e(f"s_add_u32 s{sT}, s{sW}, {4*i}\ns_lshl_b32 s{sT}, s{sT}, 6\nv_add_u32 v{vT}, s{sT}, v{vLANE}")
            k.e(f"v_mul_hi_u32 v{vT2}, v{vT}, s{sT3}")
            k.e(f"v_mul_u32_u24 v{vT3}, 10, v{vT2}\nv_sub_u32 v{vT}, v{vT}, v{vT3}\nv_lshlrev_b32 v{vT}, 4, v{vT}")
            d = vDB + i
            k.e(f"v_and_b32 v{d}, 0x23, v{vT2}")
            k.e(f"v_bfe_u32 v{vT3}, v{vT2}, 2, 2\nv_lshl_add_u32 v{d}, v{vT3}, 3, v{d}")
            k.e(f"v_bfe_u32 v{vT3}, v{vT2}, 4, 1\nv_lshl_add_u32 v{d}, v{vT3}, 2, v{d}")
            k.e(f"v_mul_u32_u24 v{d}, {ldb2}, v{d}\ns_lshl_b32 s{sT}, s{sCOL0}, 1\nv_add3_u32 v{d}, v{d}, v{vT}, s{sT}")
            if i == 2:
                k.e(f"s_cmp_ge_u32 s{sW}, 2\ns_cselect_b32 s{sT}, 0x40000000, 0\nv_add_u32 v{d}, s{sT}, v{d}")
    KB_STEP = 64 * ldb2
    for i in range(DA): k.e(f"s_lshl_b32 s{sDST+i}, s{sW}, 10\ns_add_u32 s{sDST+i}, s{sDST+i}, {4096*i}")
    for i in range(DB): k.e(f"s_lshl_b32 s{sDST+DA+i}, s{sW}, 10\ns_add_u32 s{sDST+DA+i}, s{sDST+DA+i}, {ASZ+4096*i}")

    if big:
        vAA2 = alloc(nAaddr); nv = v
    if amode == "planar":
        MSTEP = 256
        k.e(f"v_mul_u32_u24 v{vAA}, {PS}, v{vG}\nv_lshl_add_u32 v{vAA}, v{vL16}, 4, v{vAA}")
        k.e(f"s_mul_i32 s{sT}, s{sWM}, {MT*256}\nv_add_u32 v{vAA}, s{sT}, v{vAA}")
    else:
        MSTEP = 2048
        k.e(f"v_lshrrev_b32 v{vT}, 1, v{vL16}\nv_xor_b32 v{vT}, v{vT}, v{vG}\nv_lshlrev_b32 v{vT}, 4, v{vT}\nv_lshl_add_u32 v{vAA}, v{vL16}, 7, v{vT}")
        k.e(f"s_mul_i32 s{sT}, s{sWM}, {MT*2048}\nv_add_u32 v{vAA}, s{sT}, v{vAA}\nv_xor_b32 v{vAA+1}, 64, v{vAA}")
    if big:
        k.e(f"s_mul_i32 s{sT}, s{sWN}, {2*MSTEP}")
        for j in range(nAaddr):
            k.e(f"v_sub_u32 v{vAA2+j}, v{vAA+j}, s{sT}\nv_add_u32 v{vAA+j}, s{sT}, v{vAA+j}")
    def xaddr(mt, ks):
        base = (vAA if (mt < 2 or not big) else vAA2)
        if amode == "planar": return base, 4 * ks * PS + mt * 256
        return base + ks, mt * 2048
    k.e(f"v_lshrrev_b32 v{vT}, 2, v{vL16}\nv_and_b32 v{vT2}, 3, v{vL16}")
    if big:
        k.e(f"v_and_b32 v{vT3}, 1, v{vG}\nv_lshl_add_u32 v{vT3}, v{vT3}, 2, v{vT}")
        k.e(f"v_lshl_add_u32 v{vT}, v{vG}, 3, v{vT}\nv_lshlrev_b32 v{vT}, 8, v{vT}\nv_lshl_add_u32 v{vT}, v{vT2}, 3, v{vT}\nv_add_u32 v{vT}, {ASZ}, v{vT}")
        for nt in range(NT):
            k.e(f"s_lshl_b32 s{sT}, s{sWM}, 1\ns_add_u32 s{sT}, s{sT}, {nt}\ns_and_b32 s{sT}, s{sT}, 3\ns_lshl_b32 s{sT2}, s{sWN}, 2\ns_add_u32 s{sT}, s{sT}, s{sT2}")
            k.e(f"v_xor_b32 v{vBA+nt}, s{sT}, v{vT3}\nv_lshl_add_u32 v{vBA+nt}, v{vBA+nt}, 5, v{vT}")
        def waddr(nt, ks, sec): return vBA + nt, ks * 8192 + sec * 1024
    else:
        k.e(f"v_lshl_add_u32 v{vT}, v{vG}, 2, v{vT}\nv_mul_u32_u24 v{vT}, 160, v{vT}\nv_lshl_add_u32 v{vBA}, v{vT2}, 3, v{vT}\nv_add_u32 v{vBA}, {ASZ}, v{vBA}")
        def waddr(nt, ks, sec): return vBA, ks * 32 * 160 + sec * 16 * 160 + nt * 32

    for i in range(MT * NT * 4): k.e(f"v_mov_b32 v{vACC+i}, 0")
    if ln:
        for i in range(2): k.e(f"v_mov_b32 v{vSUM+i}, 0\nv_mov_b32 v{vSQ+i}, 0\nv_mov_b32 v{vCS+i}, 0")

    k.e("s_waitcnt lgkmcnt(0)")
    k.stamp(1)
    A_src = cfg["A"]; B_src = cfg["B"]
    if A_src[0] == "ws": srd(k, SA, P_WS, A_src[1], A_src[2])
    else: srd(k, SA, A_src[0], 0, A_src[2])
    srd(k, SB, B_src, 0, Kd * N * 2)
    O_dst = cfg["O"]
    if O_dst[0] == "ws": srd(k, SO, P_WS, O_dst[1], O_dst[2])
    else: srd(k, SO, O_dst[0], 0, O_dst[2])
    if 'noload' in ABL: k.e(f"s_mov_b32 s{SA+2}, 0\ns_mov_b32 s{SB+2}, 0")
    k.e(f"s_mov_b32 s{sNRA}, s{SA+2}\ns_mov_b32 s{sNRB}, s{SB+2}")

    if not ln:
        R = cfg["R"]
        if R[0] == "ws": srd(k, SR, P_WS, R[1], R[2])
        else: srd(k, SR, R[0], 0, R[2])
        k.e(f"s_lshl_b32 s{sT}, s{sW}, 4\ns_add_u32 s{sT}, s{sT}, s{sROW0}\nv_add_u32 v{vT}, s{sT}, v{vL16}")
        if cfg["rmode"] == "row":
            k.e(f"v_mul_u32_u24 v{vT}, 1280, v{vT}\nv_lshl_add_u32 v{vT}, v{vG}, 3, v{vT}\ns_lshl_b32 s{sT}, s{sCOL0}, 1\nv_add_u32 v{vT}, s{sT}, v{vT}")
            for nt in range(NT):
                k.e(f"buffer_load_dwordx2 {vr(vRES+2*nt,2)}, v{vT}, {sr(SR,4)}, 0 offen offset:{nt*32}")
        else:
            k.e(f"v_lshlrev_b32 v{vT}, 4, v{vT}\nv_lshrrev_b32 v{vT2}, 1, v{vG}\nv_mul_u32_u24 v{vT2}, {PL}, v{vT2}\nv_add_u32 v{vT}, v{vT}, v{vT2}")
            k.e(f"v_and_b32 v{vT2}, 1, v{vG}\nv_lshl_add_u32 v{vT}, v{vT2}, 3, v{vT}")
            k.e(f"s_lshr_b32 s{sT}, s{sCOL0}, 3\ns_mul_i32 s{sT}, s{sT}, {PL}")
            for nt in range(NT):
                k.e(f"buffer_load_dwordx2 {vr(vRES+2*nt,2)}, v{vT}, {sr(SR,4)}, s{sT} offen")
                if nt < NT - 1: k.e(f"s_add_u32 s{sT}, s{sT}, {2*PL}")

    def issue_dma():
        if 'nodma' in ABL: return
        for i in range(DA):
            k.e(f"s_add_u32 m0, s{sPF}, s{sDST+i}\ns_nop 0\nbuffer_load_dwordx4 v{vDA+i}, {sr(SA,4)}, s{sKA} offen lds")
        for i in range(DB):
            k.e(f"s_add_u32 m0, s{sPF}, s{sDST+DA+i}\ns_nop 0\nbuffer_load_dwordx4 v{vDB+i}, {sr(SB,4)}, s{sKB} offen lds")
        k.e(f"s_add_u32 s{sKA}, s{sKA}, {KA_STEP}\ns_add_u32 s{sKB}, s{sKB}, {KB_STEP}")

    def read_frags(st, ks):
        if 'noread' in ABL: return
        for mt in range(MT):
            a, off = xaddr(mt, ks)
            k.e(f"ds_read_b128 {vr(vXF[st]+4*mt,4)}, v{a} offset:{off}")
        for nt in range(NT):
            for sec in range(2):
                a, off = waddr(nt, ks, sec)
                k.e(f"ds_read_b64_tr_b16 {vr(vWF[st]+4*nt+2*sec,2)}, v{a} offset:{off}")
    NRD = MT + 2 * NT

    def mfmas(st):
        if 'nomfma' in ABL: return
        stat = []
        if ln:
            for mt in range(2):
                for r in range(4):
                    x = vXF[st] + 4 * mt + r
                    stat.append(f"v_dot2_f32_bf16 v{vSUM+mt}, v{x}, s{sONE}, v{vSUM+mt}")
                    stat.append(f"v_dot2_f32_bf16 v{vSQ+mt}, v{x}, v{x}, v{vSQ+mt}")
            for nt in range(2):
                for r in range(4):
                    stat.append(f"v_dot2_f32_bf16 v{vCS+nt}, v{vWF[st]+4*nt+r}, s{sONE}, v{vCS+nt}")
        n = MT * NT; i = 0
        for mt in range(MT):
            for nt in range(NT):
                a = acc(mt, nt)
                k.e(f"v_mfma_f32_16x16x32_bf16 {vr(a,4)}, {vr(vWF[st]+4*nt,4)}, {vr(vXF[st]+4*mt,4)}, {vr(a,4)}")
                lo = len(stat) * i // n; hi = len(stat) * (i + 1) // n
                for s_ in stat[lo:hi]: k.e(s_)
                i += 1

    k.e(f"s_mov_b32 s{sKA}, 0\ns_mov_b32 s{sKB}, 0\ns_mov_b32 s{sPF}, 0")
    for st in range(NSL):
        issue_dma()
        k.e(f"s_add_u32 s{sPF}, s{sPF}, {SLOT}")
    k.e(f"s_mov_b32 s{sPF}, 0\ns_mov_b32 s{sSLOT}, 0\ns_mov_b32 s{sC}, 0")
    k.stamp(2)
    k.e(f"s_waitcnt vmcnt({(NSL-1)*DD})\ns_barrier")
    k.stamp(3)
    read_frags(0, 0)
    Lloop = k.newlab("loop")
    k.lab(Lloop)
    read_frags(1, 1)
    k.e(f"s_add_u32 s{sSLOT}, s{sSLOT}, 1\ns_cmp_eq_u32 s{sSLOT}, {NSL}\ns_cselect_b32 s{sDELTA}, s{sWRAP}, {SLOT}\ns_cselect_b32 s{sSLOT}, 0, s{sSLOT}")
    k.e(f"s_cmp_lt_u32 s{sC}, {NST-NSL}\ns_cselect_b32 s{SA+2}, s{sNRA}, 0\ns_cselect_b32 s{SB+2}, s{sNRB}, 0")
    k.e(f"s_waitcnt lgkmcnt({min(NRD,15)})")
    for j in range(nAaddr):
        k.e(f"v_add_u32 v{vAA+j}, s{sDELTA}, v{vAA+j}")
        if big: k.e(f"v_add_u32 v{vAA2+j}, s{sDELTA}, v{vAA2+j}")
    for j in range(nBaddr): k.e(f"v_add_u32 v{vBA+j}, s{sDELTA}, v{vBA+j}")
    mfmas(0)
    k.e(f"s_waitcnt vmcnt({(NSL-2)*DD}) lgkmcnt(0)\ns_barrier")
    issue_dma()
    k.e(f"s_add_u32 s{sPF}, s{sPF}, s{sDELTA}")
    read_frags(0, 0)
    mfmas(1)
    k.e(f"s_add_u32 s{sC}, s{sC}, 1\ns_cmp_lt_u32 s{sC}, {NST}\ns_cbranch_scc1 {Lloop}")

    k.e("s_waitcnt lgkmcnt(0)")
    k.stamp(4)
    if ln:
        k.e("s_nop 2")
        for r in [vSUM, vSUM+1, vSQ, vSQ+1, vCS, vCS+1]:
            k.e(f"v_mov_b32 v{vT}, v{r}\ns_nop 1\nv_permlane32_swap_b32 v{r}, v{vT}\ns_nop 0\nv_add_f32 v{r}, v{r}, v{vT}")
            k.e(f"v_mov_b32 v{vT}, v{r}\ns_nop 1\nv_permlane16_swap_b32 v{r}, v{vT}\ns_nop 0\nv_add_f32 v{r}, v{r}, v{vT}")
        k.e(f"s_lshl_b32 s{sT}, s{sWM}, 6\ns_lshl_b32 s{sT2}, s{sWN}, 5\ns_add_u32 s{sT}, s{sT}, s{sT2}\nv_add_u32 v{vT}, s{sT}, v{vL16}\nv_lshlrev_b32 v{vT}, 3, v{vT}")
        k.e(f"v_mov_b32 v{vPK}, v{vSUM}\nv_mov_b32 v{vPK+1}, v{vSQ}\nv_mov_b32 v{vPK+2}, v{vSUM+1}\nv_mov_b32 v{vPK+3}, v{vSQ+1}")
        k.e(f"v_add_u32 v{vT}, {XCH}, v{vT}")
        k.e(f"ds_write_b64 v{vT}, {vr(vPK,2)}\nds_write_b64 v{vT}, {vr(vPK+2,2)} offset:128")
        k.e(f"s_lshl_b32 s{sT}, s{sWN}, 6\ns_lshl_b32 s{sT2}, s{sWM}, 5\ns_add_u32 s{sT}, s{sT}, s{sT2}\nv_add_u32 v{vT2}, s{sT}, v{vL16}\nv_lshlrev_b32 v{vT2}, 2, v{vT2}")
        k.e(f"v_add_u32 v{vT2}, {XCH+1024}, v{vT2}")
        k.e(f"ds_write_b32 v{vT2}, v{vCS}\nds_write_b32 v{vT2}, v{vCS+1} offset:64")
        k.e("s_waitcnt lgkmcnt(0)\ns_barrier")
        k.e(f"s_lshl_b32 s{sT}, s{sWN}, 9\nv_sub_u32 v{vT3}, v{vT}, s{sT}")
        for mt in range(MT):
            if mt < 2: k.e(f"ds_read_b64 {vr(vST+2*mt,2)}, v{vT} offset:{128*mt}")
            else:      k.e(f"ds_read_b64 {vr(vST+2*mt,2)}, v{vT3} offset:{128*mt}")
        k.e(f"s_lshl_b32 s{sT}, s{sWN}, 8\ns_lshl_b32 s{sT2}, s{sWM}, 7\ns_add_u32 s{sT3}, s{sT}, s{sT2}\ns_sub_u32 s{sT}, s{sT}, s{sT2}")
        k.e(f"v_lshlrev_b32 v{vT2}, 4, v{vG}\nv_add_u32 v{vT2}, {XCH+1024}, v{vT2}\nv_add_u32 v{vT3}, s{sT}, v{vT2}\nv_add_u32 v{vT2}, s{sT3}, v{vT2}")
        for nt in range(NT):
            k.e(f"ds_read_b128 {vr(vCSR+4*nt,4)}, v{vT2 if nt < 2 else vT3} offset:{64*nt}")
        if epi == "qkv":
            k.e(f"s_cmp_lt_u32 s{sCB}, 5\ns_cselect_b32 s{sSC}, 0x{f2u(QSCALE):x}, 1.0")
        k.e(f"s_mov_b32 s{sT}, 0x{f2u(1.0/D):x}\ns_mov_b32 s{sT2}, 0x{f2u(1e-5):x}")
        k.e("s_waitcnt lgkmcnt(0)")
        for mt in range(MT):
            s_, q_ = vST + 2 * mt, vST + 2 * mt + 1
            nm, rs = vNM + 2 * mt, vRS + 2 * mt
            k.e(f"v_mul_f32 v{s_}, s{sT}, v{s_}")
            k.e(f"v_mul_f32 v{q_}, s{sT}, v{q_}")
            k.e(f"v_fma_f32 v{q_}, -v{s_}, v{s_}, v{q_}")
            k.e(f"v_max_f32 v{q_}, 0, v{q_}\nv_add_f32 v{q_}, s{sT2}, v{q_}\nv_rsq_f32 v{rs}, v{q_}\nv_sub_f32 v{nm}, 0, v{s_}")
            if epi == "qkv": k.e(f"v_mul_f32 v{rs}, s{sSC}, v{rs}")
        k.e(f"v_and_b32 v{vT}, 1, v{vG}\nv_lshlrev_b32 v{vT}, 1, v{vT}\nv_lshrrev_b32 v{vT2}, 1, v{vG}\nv_add_u32 v{vT}, v{vT}, v{vT2}\nv_mul_u32_u24 v{vT}, {PL}, v{vT}")
        k.e(f"v_lshl_add_u32 v{vT}, v{vL16}, 4, v{vT}")
        k.e(f"s_lshl_b32 s{sT}, s{sWM}, 6\ns_add_u32 s{sT}, s{sT}, s{sROW0}\ns_lshl_b32 s{sT}, s{sT}, 4\ns_lshl_b32 s{sT2}, s{sWN}, 9")
        k.e(f"s_add_u32 s{sT3}, s{sT}, s{sT2}\ns_sub_u32 s{sT}, s{sT}, s{sT2}")
        for mt in range(MT):
            k.e(f"v_add_u32 v{vSTA+mt}, s{sT3 if mt < 2 else sT}, v{vT}\nv_add_u32 v{vSTA+mt}, {256*mt}, v{vSTA+mt}")
        k.e(f"s_lshr_b32 s{sT}, s{sCOL0}, 3\ns_lshl_b32 s{sT2}, s{sWN}, 3\ns_add_u32 s{sT}, s{sT}, s{sT2}\ns_lshl_b32 s{sT2}, s{sWM}, 2")
        k.e(f"s_add_u32 s{sOOF}, s{sT}, s{sT2}\ns_mul_i32 s{sOOF}, s{sOOF}, {PL}")
        k.e(f"s_sub_u32 s{sOOF+1}, s{sT}, s{sT2}\ns_add_u32 s{sOOF+1}, s{sOOF+1}, 4\ns_mul_i32 s{sOOF+1}, s{sOOF+1}, {PL}")
        for mt in range(MT):
            for np_ in range(2):
                pk = vPK + 4 * ((mt * 2 + np_) % 2)
                for j in range(2):
                    nt = 2 * np_ + j
                    a = acc(mt, nt)
                    for h in range(2):
                        k.e(f"v_pk_fma_f32 {vr(a+2*h,2)}, {vr(vCSR+4*nt+2*h,2)}, {vr(vNM+2*mt,2)}, {vr(a+2*h,2)} op_sel_hi:[1,0,1]")
                    for h in range(2):
                        k.e(f"v_pk_mul_f32 {vr(a+2*h,2)}, {vr(a+2*h,2)}, {vr(vRS+2*mt,2)} op_sel_hi:[1,0]")
                    k.e(f"v_cvt_pk_bf16_f32 v{pk+2*j}, v{a}, v{a+1}\nv_cvt_pk_bf16_f32 v{pk+2*j+1}, v{a+2}, v{a+3}")
                    if epi == "ffn1":
                        k.e(f"v_pk_max_i16 v{pk+2*j}, v{pk+2*j}, 0\nv_pk_max_i16 v{pk+2*j+1}, v{pk+2*j+1}, 0")
                k.e("s_nop 1")
                k.e(f"v_permlane16_swap_b32 v{pk}, v{pk+2}\nv_permlane16_swap_b32 v{pk+1}, v{pk+3}")
                k.e("s_nop 0")
                k.e(f"buffer_store_dwordx4 {vr(pk,4)}, v{vSTA+mt}, {sr(SO,4)}, s{sOOF+np_} offen")
    else:
        k.e("s_nop 7")
        k.e(f"s_lshl_b32 s{sT}, s{sW}, 4\ns_add_u32 s{sT}, s{sT}, s{sROW0}\nv_add_u32 v{vT}, s{sT}, v{vL16}")
        if epi == "res_planar":
            k.e(f"v_and_b32 v{vT2}, 1, v{vG}\nv_lshlrev_b32 v{vT2}, 1, v{vT2}\nv_lshrrev_b32 v{vT3}, 1, v{vG}\nv_add_u32 v{vT2}, v{vT2}, v{vT3}\nv_mul_u32_u24 v{vT2}, {PL}, v{vT2}")
            k.e(f"v_lshl_add_u32 v{vSTA}, v{vT}, 4, v{vT2}")
            k.e(f"v_mul_u32_u24 v{vT3}, {PL}, v{vT3}\nv_lshl_add_u32 v{vT3}, v{vT}, 4, v{vT3}\nv_and_b32 v{vT2}, 1, v{vG}\nv_lshl_add_u32 v{vT3}, v{vT2}, 3, v{vT3}")
            k.e(f"s_lshr_b32 s{sT}, s{sCOL0}, 3\ns_mul_i32 s{sOOF}, s{sT}, {PL}\ns_add_u32 s{sOOF+1}, s{sOOF}, {4*PL}\ns_add_u32 s{sOOF+2}, s{sOOF}, {8*PL}")
        else:
            k.e(f"v_mul_u32_u24 v{vT}, 1280, v{vT}\nv_and_b32 v{vT2}, 1, v{vG}\nv_lshl_add_u32 v{vSTA}, v{vT2}, 5, v{vT}\nv_lshrrev_b32 v{vT3}, 1, v{vG}\nv_lshl_add_u32 v{vSTA}, v{vT3}, 4, v{vSTA}")
            k.e(f"v_lshl_add_u32 v{vT3}, v{vG}, 3, v{vT}")
            k.e(f"s_lshl_b32 s{sOOF}, s{sCOL0}, 1\ns_add_u32 s{sOOF+1}, s{sOOF}, 64\ns_add_u32 s{sOOF+2}, s{sOOF}, 128")
        for nt in range(NT):
            a = acc(0, nt); r = vRES + 2 * nt
            pk = vPK + 2 * (nt % 2) + 4 * ((nt // 2) % 2)
            k.e(f"v_lshlrev_b32 v{vT}, 16, v{r}\nv_and_b32 v{vT2}, 0xffff0000, v{r}\nv_add_f32 v{a}, v{a}, v{vT}\nv_add_f32 v{a+1}, v{a+1}, v{vT2}")
            k.e(f"v_lshlrev_b32 v{vT}, 16, v{r+1}\nv_and_b32 v{vT2}, 0xffff0000, v{r+1}\nv_add_f32 v{a+2}, v{a+2}, v{vT}\nv_add_f32 v{a+3}, v{a+3}, v{vT2}")
            k.e(f"v_cvt_pk_bf16_f32 v{pk}, v{a}, v{a+1}\nv_cvt_pk_bf16_f32 v{pk+1}, v{a+2}, v{a+3}")
            if nt % 2 == 1:
                p0 = pk - 2
                k.e(f"s_nop 1\nv_permlane16_swap_b32 v{p0}, v{p0+2}\nv_permlane16_swap_b32 v{p0+1}, v{p0+3}\ns_nop 0")
                k.e(f"buffer_store_dwordx4 {vr(p0,4)}, v{vSTA}, {sr(SO,4)}, s{sOOF+nt//2} offen")
            elif nt == NT - 1:
                k.e(f"buffer_store_dwordx2 {vr(pk,2)}, v{vT3}, {sr(SO,4)}, s{sOOF+2} offen")
    k.stamp(5)
    k.stamp_out(6)
    k.lab(Lend)
    k.e("s_endpgm")
    return k, nv, grid, 256, lds

def gen_attn(name):
    k = Kern(name)
    KPS = 6144; VPS = 6272; VB = 5 * KPS
    lds = VB + 5 * VPS + 8192
    NEG = 0xf149f2ca
    SQ, SO = 4, 8
    sW, sHP, sQB, sHH, sQ0, sKB0, sT, sT2, sT3, sT4, sNT = range(20, 31)
    v = 1
    def alloc(n, al=1):
        nonlocal v
        v = (v + al - 1) // al * al
        b = v; v += n; return b
    vLANE = alloc(1); vG = alloc(1); vL16 = alloc(1); vT = alloc(1); vT2 = alloc(1); vT3 = alloc(1)
    vL16x = alloc(1); vKA = alloc(1); vVA = alloc(2); vOA = alloc(2)
    vQ = alloc(8, 4); vKF = alloc(12, 4); vMD = alloc(4, 4); vMF = alloc(4, 4)
    vVF = alloc(16, 4); vO = alloc(16, 4); vM = alloc(4, 2); vPK = alloc(4, 2)
    vS = alloc(144, 4)
    nv = v
    def Sreg(j, qt): return vS + (j * 2 + qt) * 4
    Lend = k.newlab("end")
    k.e(f"s_cmp_ge_u32 s2, 256\ns_cbranch_scc1 {Lend}")
    k.e("s_load_dwordx2 s[60:61], s[0:1], 64")
    k.e(f"v_and_b32 v{vLANE}, 63, v0\nv_lshrrev_b32 v{vT}, 6, v0\nv_lshrrev_b32 v{vG}, 4, v{vLANE}\nv_and_b32 v{vL16}, 15, v{vLANE}")
    k.e(f"v_readfirstlane_b32 s{sW}, v{vT}")
    k.e(f"s_and_b32 s{sT}, s2, 7\ns_lshl_b32 s{sHP}, s{sT}, 1\ns_bfe_u32 s{sT}, s2, 0x10003\ns_add_u32 s{sHP}, s{sHP}, s{sT}\ns_lshr_b32 s{sQB}, s2, 4")
    k.e(f"s_and_b32 s{sHH}, s{sW}, 1\ns_lshr_b32 s{sT}, s{sW}, 1\ns_lshl_b32 s{sT}, s{sT}, 5\ns_lshl_b32 s{sQ0}, s{sQB}, 7")
    k.e(f"s_sub_u32 s{sKB0}, s{sQ0}, 256\ns_add_u32 s{sQ0}, s{sQ0}, s{sT}")
    k.e(f"v_lshlrev_b32 v{vL16x}, 4, v{vLANE}")
    k.e(f"v_mov_b32 v{vKF}, 0x3f803f80\nv_mov_b32 v{vKF+1}, v{vKF}\nv_mov_b32 v{vKF+2}, v{vKF}\nv_mov_b32 v{vKF+3}, v{vKF}")
    k.e(f"v_lshlrev_b32 v{vT}, 4, v0\nds_write_b128 v{vT}, {vr(vKF,4)} offset:{VB+5*VPS}")
    k.e("s_waitcnt lgkmcnt(0)")
    srd(k, SQ, P_WS, WS_QKV, 240 * PL)
    srd(k, SO, P_WS, WS_O, 80 * PL)
    for sec, cg0 in ((0, 80), (1, 160)):
        for i in range(4):
            k.e(f"s_add_u32 s{sT}, s{sW}, {8*i}\ns_min_u32 s{sT}, s{sT}, 29\ns_mul_i32 s{sT2}, s{sT}, 43\ns_lshr_b32 s{sT2}, s{sT2}, 8")
            k.e(f"s_mul_i32 s{sT3}, s{sT2}, 6\ns_sub_u32 s{sT3}, s{sT}, s{sT3}")
            k.e(f"s_mul_i32 s{sT4}, s{sHP}, 5\ns_add_u32 s{sT4}, s{sT4}, s{sT2}\ns_add_u32 s{sT4}, s{sT4}, {cg0}\ns_mul_i32 s{sT4}, s{sT4}, {PL}")
            k.e(f"s_lshl_b32 s{sT}, s{sT3}, 6\ns_add_u32 s{sT}, s{sT}, s{sKB0}\ns_lshl_b32 s{sT}, s{sT}, 4\ns_add_u32 s{sT4}, s{sT4}, s{sT}")
            k.e(f"s_mul_i32 s{sT2}, s{sT2}, {KPS if sec == 0 else VPS}\ns_lshl_b32 s{sT3}, s{sT3}, 10\ns_add_u32 s{sT2}, s{sT2}, s{sT3}")
            k.e(f"s_add_u32 m0, s{sT2}, {0 if sec == 0 else VB}\ns_nop 0\nbuffer_load_dwordx4 v{vL16x}, {sr(SQ,4)}, s{sT4} offen lds")
        if sec == 0:
            k.e(f"v_cmp_eq_u32 vcc, 2, v{vG}\nv_and_b32 v{vT}, 1, v{vG}\ns_mul_i32 s{sT}, s{sHH}, 3\nv_add_u32 v{vT}, s{sT}, v{vT}")
            k.e(f"v_cndmask_b32 v{vT}, v{vT}, 2, vcc")
            k.e(f"v_mul_u32_u24 v{vKA}, {KPS}, v{vT}")
            k.e(f"s_mul_i32 s{sT}, s{sHP}, 5\nv_add_u32 v{vT}, s{sT}, v{vT}\nv_mul_u32_u24 v{vT}, {PL}, v{vT}")
            k.e(f"v_add_u32 v{vT2}, s{sQ0}, v{vL16}\nv_lshl_add_u32 v{vT}, v{vT2}, 4, v{vT}")
            k.e(f"buffer_load_dwordx4 {vr(vQ,4)}, v{vT}, {sr(SQ,4)}, 0 offen\nbuffer_load_dwordx4 {vr(vQ+4,4)}, v{vT}, {sr(SQ,4)}, 0 offen offset:256")
    k.e(f"s_lshr_b32 s{sT}, s{sW}, 1\ns_lshl_b32 s{sT}, s{sT}, 9\nv_lshl_add_u32 v{vKA}, v{vL16}, 4, v{vKA}\nv_add_u32 v{vKA}, s{sT}, v{vKA}")
    k.e(f"v_lshrrev_b32 v{vT}, 2, v{vL16}\nv_lshl_add_u32 v{vT}, v{vG}, 2, v{vT}\nv_lshlrev_b32 v{vT}, 4, v{vT}\nv_add_u32 v{vT}, s{sT}, v{vT}\nv_add_u32 v{vT}, {VB}, v{vT}")
    k.e(f"v_and_b32 v{vT2}, 3, v{vL16}\ns_mul_i32 s{sT}, s{sHH}, 5\nv_add_u32 v{vT3}, s{sT}, v{vT2}")
    k.e(f"v_lshrrev_b32 v{vVA}, 1, v{vT3}\nv_mul_u32_u24 v{vVA}, {VPS}, v{vVA}\nv_and_b32 v{vT3}, 1, v{vT3}\nv_lshl_add_u32 v{vVA}, v{vT3}, 3, v{vVA}\nv_add_u32 v{vVA}, v{vVA}, v{vT}")
    k.e(f"s_add_u32 s{sT}, s{sT}, 4\nv_mov_b32 v{vT3}, s{sT}\nv_cmp_eq_u32 vcc, 0, v{vT2}\ns_nop 1\nv_cndmask_b32 v{vT3}, 10, v{vT3}, vcc")
    k.e(f"v_lshrrev_b32 v{vVA+1}, 1, v{vT3}\nv_mul_u32_u24 v{vVA+1}, {VPS}, v{vVA+1}\nv_and_b32 v{vT3}, 1, v{vT3}\nv_lshl_add_u32 v{vVA+1}, v{vT3}, 3, v{vVA+1}\nv_add_u32 v{vVA+1}, v{vVA+1}, v{vT}")
    k.e(f"s_mul_i32 s{sT}, s{sHP}, 10\ns_mul_i32 s{sT2}, s{sHH}, 5\ns_add_u32 s{sT}, s{sT}, s{sT2}\nv_add_u32 v{vT}, s{sT}, v{vG}")
    k.e(f"v_add_u32 v{vT3}, s{sQ0}, v{vL16}\nv_lshlrev_b32 v{vT3}, 4, v{vT3}")
    k.e(f"v_lshrrev_b32 v{vOA}, 1, v{vT}\nv_mul_u32_u24 v{vOA}, {PL}, v{vOA}\nv_and_b32 v{vT}, 1, v{vT}\nv_lshl_add_u32 v{vOA}, v{vT}, 3, v{vOA}\nv_add_u32 v{vOA}, v{vOA}, v{vT3}")
    k.e(f"s_add_u32 s{sT}, s{sT}, 4\ns_lshr_b32 s{sT2}, s{sT}, 1\ns_mul_i32 s{sT2}, s{sT2}, {PL}\ns_and_b32 s{sT}, s{sT}, 1\ns_lshl_b32 s{sT}, s{sT}, 3\ns_add_u32 s{sT}, s{sT}, s{sT2}")
    k.e(f"v_add_u32 v{vOA+1}, s{sT}, v{vT3}\nv_mov_b32 v{vT}, 0x40000000\nv_cmp_eq_u32 vcc, 0, v{vG}\ns_nop 1\nv_cndmask_b32 v{vOA+1}, v{vT}, v{vOA+1}, vcc")
    k.e(f"v_mov_b32 v{vT}, 0x{NEG:x}\nv_lshlrev_b32 v{vT2}, 2, v{vG}")
    for r in range(4):
        k.e(f"v_add_u32 v{vT3}, {r}, v{vT2}\nv_cmp_le_u32 vcc, v{vT3}, v{vL16}\ns_nop 1\nv_cndmask_b32 v{vMD+r}, v{vT}, 0, vcc\nv_cndmask_b32 v{vMF+r}, 0, v{vT}, vcc")
    k.e(f"s_sub_i32 s{sNT}, 256, s{sQ0}\ns_max_i32 s{sNT}, s{sNT}, 0\ns_lshr_b32 s{sNT}, s{sNT}, 4")
    for i in range(16): k.e(f"v_mov_b32 v{vO+i}, 0")
    k.e("s_waitcnt vmcnt(4)")
    k.e(f"s_lshl_b32 s{sT}, s{sHH}, 1\ns_sub_u32 s{sT}, 3, s{sT}")
    k.e(f"s_sub_u32 s{sT}, 3, s{sHH}\ns_add_u32 s{sT2}, s{sHH}, 2")
    k.e(f"v_cmp_le_u32 vcc, s{sT}, v{vG}\nv_cmp_le_u32 s[32:33], s{sT2}, v{vG}\ns_nop 1")
    for qt in range(2):
        k.e(f"v_cndmask_b32 v{vQ+4*qt}, v{vQ+4*qt}, 0, vcc\nv_cndmask_b32 v{vQ+4*qt+1}, v{vQ+4*qt+1}, 0, vcc")
        k.e(f"v_cndmask_b32 v{vQ+4*qt+2}, v{vQ+4*qt+2}, 0, s[32:33]\nv_cndmask_b32 v{vQ+4*qt+3}, v{vQ+4*qt+3}, 0, s[32:33]")
    k.e("s_barrier")
    skips = []
    k.e(f"ds_read_b128 {vr(vKF,4)}, v{vKA}\nds_read_b128 {vr(vKF+4,4)}, v{vKA} offset:256")
    for j in range(18):
        if j + 2 < 18: k.e(f"ds_read_b128 {vr(vKF+4*((j+2)%3),4)}, v{vKA} offset:{256*(j+2)}")
        k.e(f"s_waitcnt lgkmcnt({min(2, 17-j)})")
        kf = vKF + 4 * (j % 3)
        if j < 16:
            Ls = k.newlab("skip"); Lb = k.newlab("back")
            k.e(f"s_cmp_gt_u32 s{sNT}, {j}\ns_cbranch_scc1 {Ls}")
            skips.append((Ls, Lb, j))
        for qt in range(2):
            if (qt == 0 and j == 17) or (qt == 1 and j == 0): continue
            c = "0"
            if j == qt: c = vr(vMF, 4)
            if j == 16 + qt: c = vr(vMD, 4)
            k.e(f"v_mfma_f32_16x16x32_bf16 {vr(Sreg(j,qt),4)}, {vr(kf,4)}, {vr(vQ+4*qt,4)}, {c}")
        if j < 16: k.lab(Lb)
    for qt in range(2):
        tiles = list(range(0, 17)) if qt == 0 else list(range(1, 18))
        m = vM + 2 * qt
        first = True
        for j in tiles:
            s_ = Sreg(j, qt)
            if j >= 16 and qt == 0 and j == 16: k.e("s_nop 7")
            if qt == 1 and j == 17: k.e("s_nop 1")
            if first:
                k.e(f"v_max3_f32 v{m}, v{s_}, v{s_+1}, v{s_+2}\nv_max_f32 v{m}, v{m}, v{s_+3}"); first = False
            else:
                k.e(f"v_max3_f32 v{m}, v{m}, v{s_}, v{s_+1}\nv_max3_f32 v{m}, v{m}, v{s_+2}, v{s_+3}")
        k.e(f"v_mov_b32 v{vT}, v{m}\ns_nop 1\nv_permlane32_swap_b32 v{m}, v{vT}\ns_nop 0\nv_max_f32 v{m}, v{m}, v{vT}")
        k.e(f"v_mov_b32 v{vT}, v{m}\ns_nop 1\nv_permlane16_swap_b32 v{m}, v{vT}\ns_nop 0\nv_max_f32 v{m}, v{m}, v{vT}")
    k.e("s_waitcnt vmcnt(0)\ns_barrier")
    def vread(p):
        b = vVF + 8 * (p % 2)
        for dt in range(2):
            for sec in range(2):
                k.e(f"ds_read_b64_tr_b16 {vr(b+4*dt+2*sec,2)}, v{vVA+dt} offset:{512*p+256*sec}")
    vread(0)
    for p in range(9):
        if p + 1 < 9: vread(p + 1)
        for qt in range(2):
            m = vM + 2 * qt
            for jj in range(2):
                j = 2 * p + jj
                s_ = Sreg(j, qt)
                absent = (qt == 0 and j == 17) or (qt == 1 and j == 0)
                if absent: continue
                for h in range(2):
                    k.e(f"v_pk_add_f32 {vr(s_+2*h,2)}, {vr(s_+2*h,2)}, {vr(m,2)} op_sel_hi:[1,0] neg_lo:[0,1] neg_hi:[0,1]")
                for r in range(4): k.e(f"v_exp_f32 v{s_+r}, v{s_+r}")
            d = Sreg(2 * p, qt); s1 = Sreg(2 * p + 1, qt)
            k.e("s_nop 0")
            if qt == 1 and p == 0:
                k.e(f"v_mov_b32 v{d}, 0\nv_mov_b32 v{d+1}, 0")
            else:
                k.e(f"v_cvt_pk_bf16_f32 v{d}, v{d}, v{d+1}\nv_cvt_pk_bf16_f32 v{d+1}, v{d+2}, v{d+3}")
            if qt == 0 and p == 8:
                k.e(f"v_mov_b32 v{d+2}, 0\nv_mov_b32 v{d+3}, 0")
            else:
                k.e(f"v_cvt_pk_bf16_f32 v{d+2}, v{s1}, v{s1+1}\nv_cvt_pk_bf16_f32 v{d+3}, v{s1+2}, v{s1+3}")
        k.e(f"s_waitcnt lgkmcnt({4 if p + 1 < 9 else 0})")
        b = vVF + 8 * (p % 2)
        for qt in range(2):
            for dt in range(2):
                o = vO + (qt * 2 + dt) * 4
                k.e(f"v_mfma_f32_16x16x32_bf16 {vr(o,4)}, {vr(b+4*dt,4)}, {vr(Sreg(2*p,qt),4)}, {vr(o,4)}")
    k.e("s_nop 7")
    for qt in range(2):
        o0 = vO + qt * 8; o1 = o0 + 4
        k.e(f"v_mov_b32 v{vT}, v{o1}\nv_mov_b32 v{vT2}, v{o1}\ns_nop 1\nv_permlane16_swap_b32 v{vT}, v{vT2}\ns_nop 0\nv_rcp_f32 v{vT2}, v{vT2}\ns_nop 0")
        for r in range(4): k.e(f"v_mul_f32 v{o0+r}, v{o0+r}, v{vT2}")
        for r in range(4): k.e(f"v_mul_f32 v{o1+r}, v{o1+r}, v{vT2}")
        k.e(f"v_cvt_pk_bf16_f32 v{o0}, v{o0}, v{o0+1}\nv_cvt_pk_bf16_f32 v{o0+1}, v{o0+2}, v{o0+3}")
        k.e(f"v_cvt_pk_bf16_f32 v{o1}, v{o1}, v{o1+1}\nv_cvt_pk_bf16_f32 v{o1+1}, v{o1+2}, v{o1+3}")
        k.e(f"buffer_store_dwordx2 {vr(o0,2)}, v{vOA}, {sr(SO,4)}, 0 offen offset:{256*qt}")
        k.e(f"buffer_store_dwordx2 {vr(o1,2)}, v{vOA+1}, {sr(SO,4)}, 0 offen offset:{256*qt}")
    k.lab(Lend)
    k.e("s_endpgm")
    for Ls, Lb, j in skips:
        k.lab(Ls)
        for qt in range(2):
            if qt == 1 and j == 0: continue
            for r in range(4): k.e(f"v_mov_b32 v{Sreg(j,qt)+r}, 0x{NEG:x}")
        k.e(f"s_branch {Lb}")
    return k, nv, 256, 512, lds

HEADER = """; Kernarg layout for this problem (72 bytes, ptrs only, base s[0:1]):
;   offset   8: d_in[1] A_wqkv  shape=(640, 1920) dtype=bfloat16
;   offset  64: d_ws      268435456 bytes workspace
"""

def main(out):
    ks = []
    ks.append(gen_gemm("qkv_kernel", dict(big=True, K=D, N=3*D, amode="row", epi="qkv", slots=4,
              A=(P_X, 0, S*D*2), B=P_WQKV, O=("ws", WS_QKV, 240*PL))))
    ks.append(gen_attn("attn_kernel"))
    ks.append(gen_gemm("wo_kernel", dict(big=False, K=D, N=D, amode="planar", epi="res_planar", slots=7,
              A=("ws", WS_O, 80*PL), B=P_WO, O=("ws", WS_H, 80*PL), R=(P_X, 0, S*D*2), rmode="row")))
    ks.append(gen_gemm("ffn1_kernel", dict(big=True, K=D, N=DFF, amode="planar", epi="ffn1", slots=4,
              A=("ws", WS_H, 80*PL), B=P_W1, O=("ws", WS_H1, 216*PL))))
    ks.append(gen_gemm("ffn2_kernel", dict(big=False, K=DFF, N=D, amode="planar", epi="res_out", slots=7,
              A=("ws", WS_H1, 216*PL), B=P_W2, O=(P_OUT, 0, S*D*2), R=("ws", WS_H, 80*PL), rmode="planar")))
    txt = HEADER
    for k, nv, grid, blk, lds in ks:
        txt += f"; @launch kernel={k.name} grid=({grid},1,1) block=({blk},1,1) lds={lds}\n"
    txt += '.amdgcn_target "amdgcn-amd-amdhsa--gfx950"\n.text\n'
    for k, nv, grid, blk, lds in ks: txt += k.text(nv)
    txt += '.section .rodata,"a"\n'
    for k, nv, grid, blk, lds in ks: txt += k.desc(nv)
    open(out, "w").write(txt)
    for k, nv, grid, blk, lds in ks: print(k.name, "vgprs", nv, "grid", grid, "lds", lds, "lines", len(k.L))

if __name__ == "__main__":
    main(sys.argv[1] if len(sys.argv) > 1 else "sequential_preLN__sliding_block__dense_activation_relu__prompt.s")
```
